```python
import torch

def _softmax(x, axis=-1):
    return torch.softmax(x, dim=axis)

def _gelu(x):
    return torch.nn.functional.gelu(x, approximate='tanh')

def _silu(x):
    return torch.nn.functional.silu(x)

def _sigmoid(x):
    return torch.sigmoid(x)

def _layernorm(x, axis=-1, eps=1e-05):
    m = x.mean(dim=axis, keepdim=True)
    v = x.var(dim=axis, keepdim=True, unbiased=False)
    return (x - m) / torch.sqrt(v + eps)

def _scatter_add(tgt, idx, src, axis=0):
    return tgt.clone().index_add_(axis, idx, src)

def _segment_sum(src, seg, n):
    out = torch.zeros((n,) + src.shape[1:], dtype=src.dtype)
    return out.index_add_(0, seg, src)

def _pad(x, pw):
    flat = tuple((v for pair in reversed(pw) for v in pair))
    return torch.nn.functional.pad(x, flat)
kernel_name = 'adaLN_cond__compressed_kv_cla__glu_gated_geglu__decode'

def setup_inputs():

    _w = lambda a: (lambda t: t.to(torch.bfloat16) if t.is_floating_point() else t)(torch.as_tensor(a))

    def _A_setup():
        B, H, Sq, Sk, D, M = (2, 32, 1, 8192, 128, 512)
        Dc = 4 * D
        return {'x': _w((lambda *s: torch.randn(*s, dtype=torch.bfloat16) * 0.05)(B, Sq, M)), 'c_kv': _w((lambda *s: torch.randn(*s, dtype=torch.bfloat16) * 3.2)(B, Sk, Dc)), 'w_q': _w((lambda *s: torch.randn(*s, dtype=torch.bfloat16) * 0.8)(M, H, D) * M ** (-0.5)), 'w_uk': _w((lambda *s: torch.randn(*s, dtype=torch.bfloat16) * 0.8)(Dc, H, D) * Dc ** (-0.5)), 'w_uv': _w((lambda *s: torch.randn(*s, dtype=torch.bfloat16) * 3.2)(Dc, H, D) * Dc ** (-0.5)), 'w_o': _w((lambda *s: torch.randn(*s, dtype=torch.bfloat16) * 3.2)(H, D, M) * (H * D) ** (-0.5))}
    _A_in = _A_setup()

    def _B_setup():
        B, S, Dm, Df = (2, 1, 512, 1792)
        return {'x': _w((lambda *s: torch.randn(*s, dtype=torch.bfloat16) * 0.05)(B, S, Dm)), 'w_gate': _w((lambda *s: torch.randn(*s, dtype=torch.bfloat16) * 3.2)(Dm, Df) * Dm ** (-0.5)), 'w_up': _w((lambda *s: torch.randn(*s, dtype=torch.bfloat16) * 3.2)(Dm, Df) * Dm ** (-0.5)), 'w_down': _w((lambda *s: torch.randn(*s, dtype=torch.bfloat16) * 3.2)(Df, Dm) * Df ** (-0.5))}
    _B_in = _B_setup()
    return {'A_x': _A_in['x'], 'A_c_kv': _A_in['c_kv'], 'A_w_q': _A_in['w_q'], 'A_w_uk': _A_in['w_uk'], 'A_w_uv': _A_in['w_uv'], 'A_w_o': _A_in['w_o'], 'B_x': _B_in['x'], 'B_w_gate': _B_in['w_gate'], 'B_w_up': _B_in['w_up'], 'B_w_down': _B_in['w_down'], 'c': _w((lambda *s: torch.randn(*s, dtype=torch.bfloat16) * 0.1)(2, 512) * 8.0), 'w_mod': _w((lambda *s: torch.randn(*s, dtype=torch.bfloat16) * 0.1)(512, 6 * 512) * 512 ** (-0.5) * 8.0)}

def reference(A_x, A_c_kv, A_w_q, A_w_uk, A_w_uv, A_w_o, B_x, B_w_gate, B_w_up, B_w_down, c, w_mod):

    def _A_ref(x, c_kv, w_q, w_uk, w_uv, w_o):
        B, Sq, M = (x.shape[0], x.shape[1], x.shape[2])
        Sk = c_kv.shape[1]
        H, D = (w_q.shape[1], w_q.shape[2])
        q = torch.einsum('bqm,mhd->bhqd', x, w_q)
        k = torch.einsum('bkc,chd->bhkd', c_kv, w_uk)
        v = torch.einsum('bkc,chd->bhkd', c_kv, w_uv)
        scores = torch.einsum('bhqd,bhkd->bhqk', q, k) * D ** (-0.5)
        off = Sk - Sq
        qi = torch.arange(Sq)[:, None]
        kj = torch.arange(Sk)[None, :]
        cmask = kj <= qi + off
        scores = torch.where(cmask[None, None], scores, -1000000000.0)
        p = _softmax(scores, axis=-1)
        ctx = torch.einsum('bhqk,bhkd->bhqd', p, v)
        return torch.einsum('bhqd,hdm->bqm', ctx, w_o)

    def _B_ref(x, w_gate, w_up, w_down):
        g = torch.einsum('bsd,df->bsf', x, w_gate)
        u = torch.einsum('bsd,df->bsf', x, w_up)
        h = _gelu(g) * u
        return torch.einsum('bsf,fd->bsd', h, w_down)
    x = A_x
    mod = (_silu(c) @ w_mod).reshape(c.shape[0], 6, 1, -1)
    sa, ca, ga, sb, cb, gb = (mod[:, 0].clone(), mod[:, 1].clone(), mod[:, 2].clone(), mod[:, 3].clone(), mod[:, 4].clone(), mod[:, 5].clone())
    h = _layernorm(x, axis=-1) * (1 + ca) + sa
    x = x + ga * _A_ref(h, A_c_kv, A_w_q, A_w_uk, A_w_uv, A_w_o)
    h = _layernorm(x, axis=-1) * (1 + cb) + sb
    x = x + gb * _B_ref(h, B_w_gate, B_w_up, B_w_down)
    return x
```

```python
import re

_REG_RE = re.compile(r'^(v|s|a)(?:(\d+)|\[(\d+):(\d+)\])$')
TRANS = ('v_exp_f32', 'v_log_f32', 'v_rcp_f32', 'v_rsq_f32', 'v_sqrt_f32', 'v_sin_f32', 'v_cos_f32')


def parse_reg(tok):
    tok = tok.strip()
    if tok.startswith('-'):
        tok = tok[1:]
    if tok.startswith('abs(') and tok.endswith(')'):
        tok = tok[4:-1]
    if tok.startswith('|') and tok.endswith('|'):
        tok = tok[1:-1]
    if tok == 'vcc':
        return {('s', 106), ('s', 107)}
    if tok == 'vcc_lo':
        return {('s', 106)}
    if tok == 'vcc_hi':
        return {('s', 107)}
    if tok == 'exec':
        return {('s', 126), ('s', 127)}
    if tok == 'm0':
        return {('s', 124)}
    m = _REG_RE.match(tok)
    if not m:
        return set()
    k = m.group(1)
    if m.group(2) is not None:
        return {(k, int(m.group(2)))}
    return {(k, i) for i in range(int(m.group(3)), int(m.group(4)) + 1)}


class Ins:
    __slots__ = ('text', 'mn', 'ops', 'mods', 'kind', 'dst', 'src', 'srcc', 'srcab', 'ws', 'isdpp', 'data')

    def __init__(self, text):
        self.text = text
        t = text.split(';')[0].strip()
        parts = t.split(None, 1)
        self.mn = parts[0]
        rest = parts[1] if len(parts) > 1 else ''
        ops = []
        depth = 0
        cur = ''
        for ch in rest:
            if ch in '[(':
                depth += 1
            if ch in '])':
                depth -= 1
            if ch == ',' and depth == 0:
                ops.append(cur.strip())
                cur = ''
            else:
                cur += ch
        if cur.strip():
            ops.append(cur.strip())
        self.mods = ''
        if ops:
            last = ops[-1].split(None, 1)
            ops[-1] = last[0]
            self.mods = last[1] if len(last) > 1 else ''
        self.ops = ops
        mn = self.mn
        self.dst = set()
        self.src = set()
        self.srcc = set()
        self.srcab = set()
        self.data = set()
        self.ws = 1
        self.isdpp = ('_dpp' in mn) or ('row_' in self.mods) or ('quad_perm' in self.mods)
        R = [parse_reg(o) for o in ops]
        if mn == 's_nop':
            self.kind = 'nop'
            self.ws = int(ops[0], 0) + 1
        elif mn.startswith('v_mfma'):
            self.kind = 'mfma'
            self.dst = R[0]
            self.srcab = R[1] | R[2]
            self.srcc = R[3]
            self.src = self.srcab | self.srcc
        elif mn.startswith('v_'):
            self.kind = 'valu'
            if mn.startswith('v_permlane') and 'swap' in mn:
                self.dst = R[0] | R[1]
                self.src = R[0] | R[1]
            elif mn.startswith('v_cmp'):
                self.dst = R[0]
                for r in R[1:]:
                    self.src |= r
            else:
                self.dst = R[0]
                for r in R[1:]:
                    self.src |= r
                if mn.startswith('v_fmac') or mn.startswith('v_writelane') or self.isdpp:
                    self.src |= R[0]
                if mn.startswith('v_cndmask') and len(ops) == 3:
                    self.src |= parse_reg('vcc')
        elif mn.startswith('buffer_') or mn.startswith('global_'):
            self.kind = 'vmem'
            islds = ' lds' in (' ' + self.mods)
            if 'load' in mn and not islds:
                self.dst = R[0]
                for r in R[1:]:
                    self.src |= r
            else:
                for r in R:
                    self.src |= r
                if 'store' in mn:
                    self.data = R[0] if mn.startswith('buffer_') else R[1]
                if islds:
                    self.src |= parse_reg('m0')
        elif mn.startswith('ds_'):
            self.kind = 'ds'
            if mn.startswith('ds_read') or '_rtn' in mn or 'permute' in mn or 'swizzle' in mn:
                self.dst = R[0]
                for r in R[1:]:
                    self.src |= r
            else:
                for r in R:
                    self.src |= r
        else:
            self.kind = 'salu'
            if R and not mn.startswith(('s_cmp', 's_cbranch', 's_branch', 's_waitcnt', 's_bitcmp', 's_sleep', 's_barrier', 's_endpgm', 's_setprio')):
                self.dst = R[0]
                for r in R[1:]:
                    self.src |= r
            else:
                for r in R:
                    self.src |= r


VCC = {('s', 106), ('s', 107)}


def need(p, c):
    n = 0
    if p.kind == 'mfma':
        passes = 8 if '32x32' in p.mn else 4
        far = 12 if passes == 8 else 8
        ovl = 10 if passes == 8 else 6
        war = 7 if passes == 8 else 3
        if c is None:
            return far
        if c.kind == 'mfma':
            if p.dst & c.srcab:
                n = max(n, far)
            if p.dst & c.srcc:
                if not (p.dst == c.srcc and p.mn == c.mn):
                    n = max(n, ovl)
            elif p.dst & c.dst:
                n = max(n, far)
        elif c.kind in ('valu', 'vmem', 'ds'):
            if p.dst & (c.src | c.dst):
                n = max(n, far)
            if c.kind == 'valu' and (p.srcc & c.dst):
                n = max(n, war)
        return n
    if p.kind == 'valu':
        vd = {r for r in p.dst if r[0] == 'v'}
        sd = {r for r in p.dst if r[0] == 's'}
        if c is None:
            if sd - VCC:
                return 5
            return 2
        if c.kind == 'mfma' and (vd & c.src):
            n = max(n, 2)
        if c.kind == 'valu':
            if vd & c.src:
                if c.isdpp or c.mn.startswith('v_permlane'):
                    n = max(n, 2)
                if c.mn.startswith('v_readlane') or c.mn.startswith('v_readfirstlane'):
                    n = max(n, 1)
                if p.mn.replace('_e32', '').replace('_e64', '') in TRANS:
                    n = max(n, 1)
            if sd & c.src:
                n = max(n, 4 if c.mn.startswith(('v_readlane', 'v_writelane')) else 2)
        if c.kind == 'vmem' and (sd & c.src):
            n = max(n, 5)
        if c.kind in ('vmem', 'ds') and (vd & c.src) and p.mn.replace('_e32', '').replace('_e64', '') in TRANS:
            n = max(n, 1)
        return n
    if p.kind == 'vmem' and p.data and len(p.data) > 2:
        if c is None:
            return 2
        if p.data & c.dst:
            n = max(n, 2)
        return n
    if p.kind == 'salu':
        if ('s', 124) in p.dst:
            if c is None:
                return 1
            if c.kind == 'vmem' and ('s', 124) in c.src:
                n = max(n, 1)
        return n
    return n


class Asm:
    def __init__(self):
        self.items = []
        self.uid = 0

    def __call__(self, text):
        for line in text.strip('\n').split('\n'):
            s = line.strip()
            if not s or s.startswith(';'):
                continue
            if s.endswith(':'):
                self.items.append(('l', s))
            elif s.startswith('.'):
                self.items.append(('r', s))
            else:
                self.items.append(('i', Ins(s)))

    def label(self, base):
        self.uid += 1
        return 'L_%s_%d' % (base, self.uid)

    def finish(self):
        out = []
        hist = []

        def pad(n):
            while n > 0:
                k = min(n, 16)
                ins = Ins('s_nop %d' % (k - 1))
                out.append('  ' + ins.text)
                hist.append(ins)
                n -= k

        def required(c):
            dist = 0
            req = 0
            for p in reversed(hist):
                r = need(p, c) - dist
                req = max(req, r)
                dist += p.ws
                if dist > 20:
                    break
            return req

        for kind, it in self.items:
            if kind == 'l':
                pad(required(None))
                out.append(it)
            elif kind == 'r':
                out.append(it)
            else:
                if it.mn.startswith(('s_cbranch', 's_branch')):
                    pad(required(None) - 1)
                else:
                    pad(required(it))
                out.append('  ' + it.text)
                hist.append(it)
                if len(hist) > 40:
                    del hist[:10]
        return '\n'.join(out) + '\n'
```

```python
import sys
from asmlib import Asm

NAME = 'adaLN_cond__compressed_kv_cla__glu_gated_geglu__decode_kernel'

WS_H = 0
WS_MOD = 4096
WS_AG = WS_MOD + 16384
WS_QABS = 32768
WS_R1 = WS_QABS + 131072
WS_R2 = WS_R1 + 192 * 4096
WS_P3 = 2 << 20
WS_DBG = 12 << 20
WS_BYTES = 16 << 20

ROWS = 1056
L_QIMG = 0
L_PIMG = L_QIMG + 16384
L_SMAX = L_PIMG + 4096
L_SSUM = L_SMAX + 256
L_CNT = L_SSUM + 256
L_HIMG = L_CNT + 256
L_QRED = L_HIMG + 2048
L_CKV = L_QRED + 4096
LDS_BYTES = L_CKV + 128 * ROWS
assert LDS_BYTES <= 163840
L_SCP = L_QIMG
L_S0RED = L_QIMG + 2048
L_CSCR = L_CKV
L_WSCR = L_CSCR + 18432
L_XCH = L_WSCR + 512
L_XST = L_XCH + 1024
L_CPRIV = L_XST + 64
L_PCTX = L_CPRIV + 1024
L_YIMG1 = L_PCTX + 512
L_YIMG2 = L_YIMG1 + 4160
L_YST = L_YIMG2 + 4160
L_FRED = L_YST + 64
L_HHP = L_FRED + 4096
assert L_HHP + 512 < 65536
C_S0, C_A1, C_A2, C_BQ, C_BM, C_BP, C_S3D, C_A3, C_A4, C_Y1, C_Y2, C_F1, C_F2 = [4 * i for i in range(13)]

TAG = 0x5AC3A7E1
SCALE = 0.08838834764831845 * 1.4426950408889634
LOG2E = 1.4426950408889634


def f2u(x):
    import struct
    return struct.unpack('<I', struct.pack('<f', x))[0]


def gen(cfg):
    a = Asm()
    DBG = cfg.get('dbg', False)
    NT_CKV = ' nt' if cfg.get('nt_ckv', True) else ''
    NT_W = ' nt' if cfg.get('nt_w', False) else ''
    NT_F = ' nt' if cfg.get('nt_f', False) else ''

    def srd(base, ptr, nbytes):
        a(f'''
  s_mov_b32 s{base}, s{ptr}
  s_mov_b32 s{base+1}, s{ptr+1}
  s_mov_b32 s{base+2}, {nbytes}
  s_mov_b32 s{base+3}, 0x00020000''')

    def stamp(k):
        if not DBG:
            return
        a(f'''
  s_memrealtime s[98:99]
  s_waitcnt lgkmcnt(0)
  v_writelane_b32 v15, s98, {k}''')

    def tmo(lbl_retry):
        a(f'''
  s_sub_u32 s7, s7, 1
  s_cbranch_scc0 {lbl_retry}
  s_branch L_exit''')

    def signal(cnt):
        a(f'''
  s_waitcnt lgkmcnt(0)
  s_mov_b64 exec, 1
  ds_add_u32 v2, v3 offset:{L_CNT + cnt}
  s_mov_b64 exec, -1''')

    def wait_cnt(cnt, target, sleep=0):
        l = a.label('wc')
        d = a.label('wcd')
        a(f'''
{l}:
  ds_read_b32 v4, v2 offset:{L_CNT + cnt}
  s_waitcnt lgkmcnt(0)
  v_readfirstlane_b32 s68, v4
  s_cmp_ge_u32 s68, {target}
  s_cbranch_scc1 {d}''')
        if sleep:
            a(f'  s_sleep {sleep}')
        tmo(l)
        a(f'{d}:')

    def tbar(cnt):
        signal(cnt)
        wait_cnt(cnt, 4)

    def gpoll(loads, tagcheck=None, init_masks=None, sentinel=True):
        n = len(loads)
        for i in range(n):
            m = (init_masks or {}).get(i, None)
            if m is None:
                a(f'  s_mov_b64 s[{70+2*i}:{71+2*i}], -1')
            else:
                a(f'  s_mov_b32 s{70+2*i}, {m & 0xffffffff}\n  s_mov_b32 s{71+2*i}, {m >> 32}')
        if sentinel and n > 1:
            l = a.label('sp')
            d = a.label('spd')
            a(f'{l}:')
            a('  s_mov_b64 exec, s[70:71]')
            a(loads[0][0])
            a(f'''
  s_waitcnt vmcnt(0)
  v_cmp_eq_u32 vcc, s88, v{loads[0][1]}
  s_cbranch_vccnz {d}
  s_sleep 1''')
            tmo(l)
            a(f'{d}:')
        l = a.label('gp')
        d = a.label('gpd')
        a(f'{l}:')
        for i, (txt, tr) in enumerate(loads):
            sk = a.label('gs')
            a(f'  s_mov_b64 exec, s[{70+2*i}:{71+2*i}]\n  s_cbranch_execz {sk}')
            a(txt)
            a(f'{sk}:')
        a('  s_waitcnt vmcnt(0)')
        for i, (txt, tr) in enumerate(loads):
            a(f'  s_mov_b64 exec, s[{70+2*i}:{71+2*i}]')
            if tagcheck:
                tagcheck(i, tr)
            else:
                a(f'  v_cmp_ne_u32_e64 s[{70+2*i}:{71+2*i}], s88, v{tr}')
        a('  s_mov_b64 exec, -1')
        a('  s_mov_b64 s[68:69], s[70:71]')
        for i in range(1, n):
            a(f'  s_or_b64 s[68:69], s[68:69], s[{70+2*i}:{71+2*i}]')
        a(f'''
  s_cmp_eq_u64 s[68:69], 0
  s_cbranch_scc1 {d}''')
        tmo(l)
        a(f'{d}:')

    def xred(v, t, op, steps):
        for st in steps:
            if st[0] == 'r':
                a(f'  {op}_dpp v{v}, v{v}, v{v} row_ror:{st[1:]} row_mask:0xf bank_mask:0xf')
            else:
                a(f'''
  v_mov_b32 v{t}, v{v}
  v_permlane{st[1:]}_swap_b32 v{v}, v{t}
  {op} v{v}, v{v}, v{t}''')

    def perm8(src, dst):
        for c2 in range(4):
            for q in range(4):
                lo = src + 8 * q + c2
                hi = src + 8 * q + 4 + c2
                a(f'  v_perm_b32 v{dst + 8*c2 + q}, v{hi}, v{lo}, s86')
                a(f'  v_perm_b32 v{dst + 8*c2 + 4 + q}, v{hi}, v{lo}, s87')

    def perm2(src, dst):
        for q in range(4):
            a(f'  v_perm_b32 v{dst + q}, v{src + 2*q + 1}, v{src + 2*q}, s86')
            a(f'  v_perm_b32 v{dst + 4 + q}, v{src + 2*q + 1}, v{src + 2*q}, s87')

    def mfma(d, A, B, first):
        c = '0' if first else f'v[{d}:{d+3}]'
        a(f'  v_mfma_f32_16x16x32_bf16 v[{d}:{d+3}], v[{A}:{A+3}], v[{B}:{B+3}], {c}')

    def publish_rs(dacc, gl, soff_base_s, stride_i):
        for r in range(4):
            for h2 in range(4):
                idx = 4 * r + h2
                dst = gl[idx // 3] + (idx % 3)
                a(f'  v_cvt_pk_bf16_f32 v{dst}, v{dacc + 4*(2*h2) + r}, v{dacc + 4*(2*h2+1) + r}')
        a('  s_mov_b32 exec_lo, 0x00030003\n  s_mov_b32 exec_hi, 0x00030003')
        for i in range(6):
            a(f'  buffer_store_dwordx4 v[{gl[i]}:{gl[i]+3}], v5, s[8:11], s{soff_base_s} offen sc1')
            if i < 5:
                a(f'  s_add_u32 s{soff_base_s}, s{soff_base_s}, {stride_i}')
        a('  s_mov_b64 exec, -1')

    def prep_granule_tags(gl):
        for i in range(6):
            a(f'  v_mov_b32 v{gl[i]+3}, s88')
        a(f'  v_mov_b32 v{gl[5]+1}, 0\n  v_mov_b32 v{gl[5]+2}, 0')

    GLA = [224, 228, 232, 236, 184, 188]
    GLB = [224, 228, 232, 236, 240, 244]

    a(f'''
  s_cmp_ge_u32 s2, 256
  s_cbranch_scc1 L_exit
  s_load_dwordx16 s[16:31], s[0:1], 0
  s_load_dwordx8 s[32:39], s[0:1], 64
  s_load_dwordx4 s[40:43], s[0:1], 96
  s_load_dwordx2 s[44:45], s[0:1], 112
  v_and_b32 v1, 63, v0
  v_lshrrev_b32 v4, 6, v0
  v_mov_b32 v2, 0
  v_mov_b32 v3, 1
  v_mov_b32 v15, 0
  v_readfirstlane_b32 s3, v4
  s_and_b32 s4, s2, 7
  s_lshr_b32 s5, s2, 3
  s_and_b32 s6, s3, 3
  s_mov_b32 s7, 3000000
  s_mov_b32 s86, 0x05040100
  s_mov_b32 s87, 0x07060302
  s_mov_b32 s88, {TAG}
  v_lshlrev_b32 v4, 2, v1
  ds_write_b32 v4, v2 offset:{L_CNT}
  v_and_b32 v6, 15, v1
  v_lshrrev_b32 v7, 4, v1
  s_waitcnt lgkmcnt(0)''')
    srd(8, 44, WS_BYTES)
    stamp(0)
    a('''
  s_cmp_ge_u32 s3, 4
  s_cbranch_scc1 L_B''')

    a('''
  s_and_b32 s46, s5, 3
  s_lshl_b32 s46, s46, 3
  s_add_u32 s46, s46, s4
  s_lshr_b32 s47, s5, 2''')
    srd(12, 20, 4 << 20)
    srd(48, 22, 4 << 20)
    srd(52, 42, 256)
    a(f'''
  v_lshlrev_b32 v8, 16, v7
  v_lshl_add_u32 v8, v6, 4, v8
  v_lshlrev_b32 v9, 13, v6
  v_lshl_add_u32 v9, v7, 4, v9
  s_lshl_b32 s64, s6, 20              ; 128v*8192
  s_lshl_b32 s65, s46, 8
  s_add_u32 s64, s64, s65
  v_lshlrev_b32 v10, 4, v0
  v_mov_b32 v240, 0
  v_mov_b32 v241, 0
  v_mov_b32 v242, 0
  v_mov_b32 v243, 0
  s_barrier''')
    WQB = [64, 96, 128, 160]
    for s in range(4):
        for jj in range(8):
            a(f'  buffer_load_dwordx4 v[{WQB[s]+4*jj}:{WQB[s]+4*jj+3}], v8, s[12:15], s64 offen{NT_W}')
            a('  s_add_u32 s64, s64, %d' % (8192 if jj < 7 else 8192 * 25))
    a('''
  s_lshl_b32 s64, s47, 6
  s_lshl_b32 s66, s6, 4
  s_add_u32 s64, s64, s66
  s_lshl_b32 s64, s64, 13
  s_add_u32 s64, s64, s65''')
    for s in range(4):
        a(f'  buffer_load_dwordx4 v[{224+4*s}:{227+4*s}], v9, s[48:51], s64 offen offset:{64*s}{NT_W}')
    a(f'''
  s_lshl_b32 s64, s46, 3
  s_add_u32 s64, s64, s47
  s_mul_i32 s64, s64, 24576
  s_add_u32 s89, s64, {WS_P3}
  s_mov_b32 s64, s89''')
    for i in range(6):
        a('  buffer_store_dwordx4 v[240:243], v10, s[8:11], s64 offen sc1')
        if i < 5:
            a('  s_add_u32 s64, s64, 4096')
    a(f'''
  s_mul_i32 s64, s2, 171
  s_lshr_b32 s64, s64, 10
  s_mul_i32 s65, s64, 6
  s_sub_u32 s65, s2, s65              ; i
  s_and_b32 s66, s64, 3               ; g'
  s_lshr_b32 s67, s64, 2
  s_and_b32 s92, s67, 1               ; b
  s_lshr_b32 s67, s67, 1              ; w
  s_lshl_b32 s90, s67, 7
  s_lshl_b32 s66, s66, 5
  s_add_u32 s90, s90, s66
  s_mul_i32 s66, s65, 6
  s_add_u32 s90, s90, s66             ; col0
  s_cmp_eq_u32 s65, 5
  s_cselect_b32 s91, 2, 6
  s_cmp_ge_u32 s2, 192
  s_cbranch_scc1 L_A_noclr
  s_lshl_b32 s64, s2, 12
  s_add_u32 s64, s64, {WS_R1}
  buffer_store_dwordx4 v[240:243], v10, s[8:11], s64 offen sc1
  s_lshl_b32 s64, s2, 11
  s_add_u32 s64, s64, {WS_R2}
  v_lshlrev_b32 v11, 3, v0
  buffer_store_dwordx2 v[240:241], v11, s[8:11], s64 offen sc1
  s_lshl_b32 s64, s92, 9
  s_add_u32 s64, s64, s90
  s_lshl_b32 s64, s64, 3
  s_add_u32 s64, s64, {WS_AG}
  v_cmp_gt_u32 vcc, s91, v0
  s_and_saveexec_b64 s[66:67], vcc
  s_cbranch_execz L_A_noag
  buffer_store_dwordx2 v[240:241], v11, s[8:11], s64 offen sc1
L_A_noag:
  s_mov_b64 exec, -1
L_A_noclr:''')
    assert all((w * 171) >> 10 == w // 6 for w in range(256))
    stamp(1)
    WQF = [192, 64, 96, 128]
    for s in range(4):
        a(f'  s_waitcnt vmcnt({(3-s)*8 + 10})')
        perm8(WQB[s], WQF[s])
    stamp(2)
    a('''
  v_and_b32 v11, 127, v0
  v_lshrrev_b32 v11, 2, v11
  v_lshlrev_b32 v11, 2, v11''')

    def hcheck(i, tr):
        a('''
  v_not_b32 v21, v20
  v_cmp_ne_u32_e64 s[70:71], v20, v18
  v_cmp_ne_u32_e64 s[66:67], v21, v19
  s_or_b64 s[70:71], s[70:71], s[66:67]
  v_cmp_eq_u32_e64 s[66:67], 0, v20
  s_or_b64 s[70:71], s[70:71], s[66:67]''')
    gpoll([(f'  buffer_load_dwordx4 v[16:19], v10, s[8:11], 0 offen sc1\n  buffer_load_dword v20, v11, s[52:55], 0 offen sc1', 18)],
          tagcheck=hcheck, sentinel=False)
    a(f'''
  v_lshlrev_b32 v11, 3, v0
  ds_write_b64 v11, v[16:17] offset:{L_HIMG}''')
    stamp(3)
    tbar(C_A1)
    a(f'''
  v_and_b32 v11, 1, v6
  v_lshlrev_b32 v11, 10, v11
  v_lshl_add_u32 v11, v7, 4, v11
  s_lshl_b32 s64, s6, 8
  v_add_u32 v11, s64, v11''')
    for s in range(4):
        a(f'  ds_read_b128 v[{48+4*s}:{51+4*s}], v11 offset:{L_HIMG + 64*s}')
    for s in range(4):
        a(f'  s_waitcnt lgkmcnt({3-s})')
        for i8 in range(8):
            mfma(16 + 4 * i8, 48 + 4 * s, WQF[s] + 4 * i8, s == 0)
    a(f'''
  v_lshlrev_b32 v11, 5, v6
  s_lshl_b32 s64, s6, 10
  v_add_u32 v11, s64, v11
  s_mov_b64 exec, 0xffff''')
    for b in range(2):
        for h2 in range(4):
            off = (L_QRED + b * 512 + h2 * 8) // 4
            if b == 0 and h2 == 0:
                a(f'  v_add_u32 v11, {L_QRED}, v11')
            o0 = (b * 512 + h2 * 8) // 4
            a(f'  ds_write2_b32 v11, v{16 + 8*h2 + b}, v{16 + 8*h2 + 4 + b} offset0:{o0} offset1:{o0+1}')
    a('  s_mov_b64 exec, -1')
    tbar(C_A2)
    a(f'''
  v_lshlrev_b32 v11, 4, v1
  ds_read_b128 v[16:19], v11 offset:{L_QRED}
  ds_read_b128 v[20:23], v11 offset:{L_QRED + 1024}
  ds_read_b128 v[24:27], v11 offset:{L_QRED + 2048}
  ds_read_b128 v[28:31], v11 offset:{L_QRED + 3072}
  v_lshlrev_b32 v11, 3, v0            ; qpriv: v*512 + l*8
  v_and_b32 v12, 1, v6
  v_lshlrev_b32 v12, 8, v12
  v_lshl_add_u32 v12, v7, 4, v12
  s_lshl_b32 s64, s6, 9
  v_add_u32 v12, s64, v12
  s_waitcnt lgkmcnt(2)
  v_pk_add_f32 v[16:17], v[16:17], v[20:21]
  v_pk_add_f32 v[18:19], v[18:19], v[22:23]
  s_waitcnt lgkmcnt(0)
  v_pk_add_f32 v[24:25], v[24:25], v[28:29]
  v_pk_add_f32 v[26:27], v[26:27], v[30:31]
  v_pk_add_f32 v[16:17], v[16:17], v[24:25]
  v_pk_add_f32 v[18:19], v[18:19], v[26:27]
  v_cvt_pk_bf16_f32 v16, v16, v17
  v_cvt_pk_bf16_f32 v17, v18, v19
  ds_write_b64 v11, v[16:17] offset:{L_HIMG}
  s_waitcnt lgkmcnt(0)''')
    for s in range(4):
        a(f'  ds_read_b128 v[{48+4*s}:{51+4*s}], v12 offset:{L_HIMG + 64*s}')
    a(f'''
  v_lshlrev_b32 v5, 16, v6            ; b*65536 (lanes n<2)
  v_lshrrev_b32 v11, 1, v7
  v_lshl_add_u32 v5, v11, 9, v5
  v_and_b32 v11, 1, v7
  v_lshl_add_u32 v5, v11, 4, v5
  s_lshr_b32 s64, s46, 4
  s_lshl_b32 s64, s64, 15
  s_lshl_b32 s65, s47, 2
  s_add_u32 s65, s65, s6
  s_lshl_b32 s65, s65, 10             ; (8j+2v)*512
  s_add_u32 s64, s64, s65
  s_and_b32 s65, s46, 15
  s_lshl_b32 s65, s65, 5
  s_add_u32 s64, s64, s65
  s_add_u32 s64, s64, {WS_QABS}
  v_mov_b32 v22, s88
  v_mov_b32 v23, s88''')
    for s in range(4):
        a(f'  s_waitcnt lgkmcnt({3-s})')
        mfma(16, 224 + 4 * s, 48 + 4 * s, s == 0)
    a('''
  v_cvt_pk_bf16_f32 v20, v16, v17
  v_cvt_pk_bf16_f32 v21, v18, v19
  s_mov_b32 exec_lo, 0x00030003
  s_mov_b32 exec_hi, 0x00030003
  buffer_store_dwordx4 v[20:23], v5, s[8:11], s64 offen sc1
  s_mov_b64 exec, -1''')
    stamp(4)
    srd(12, 26, 4 << 20)
    srd(48, 24, 4 << 20)
    a(f'''
  v_lshlrev_b32 v8, 13, v7
  v_lshl_add_u32 v8, v6, 4, v8
  v_and_b32 v9, 1, v7
  v_lshlrev_b32 v9, 5, v9
  v_lshrrev_b32 v11, 1, v7
  v_lshl_add_u32 v9, v11, 2, v9
  v_lshlrev_b32 v9, 13, v9
  v_lshl_add_u32 v9, v6, 2, v9
  s_lshl_b32 s64, s47, 19             ; 64j*8192
  s_lshl_b32 s65, s46, 8
  s_add_u32 s64, s64, s65
  s_lshl_b32 s65, s6, 6
  s_add_u32 s64, s64, s65''')
    for ks in range(2):
        for jj in range(8):
            ro = 16 * (jj >> 2) + (jj & 3) + 8 * ks
            a(f'  s_add_u32 s65, s64, {ro * 8192}')
            a(f'  buffer_load_dword v{224 + 8*ks + jj}, v9, s[48:51], s65 offen{NT_W}')
    a('''
  s_lshl_b32 s64, s46, 17
  s_lshl_b32 s65, s6, 8
  s_add_u32 s64, s64, s65''')
    for s in range(4):
        for jj in range(8):
            a(f'  buffer_load_dwordx4 v[{WQB[s]+4*jj}:{WQB[s]+4*jj+3}], v8, s[12:15], s64 offen offset:{(jj&3)*1024}{NT_W}')
            if jj == 3:
                a('  s_add_u32 s64, s64, 4096')
            if jj == 7:
                a('  s_add_u32 s64, s64, %d' % (28 * 1024))
    a('  s_waitcnt vmcnt(32)')
    perm2(224, 240)
    perm2(232, 248)
    for s in range(4):
        a(f'  s_waitcnt vmcnt({(3-s)*8})')
        perm8(WQB[s], WQF[s])
    stamp(5)
    srd(48, 16, 2048)
    a(f'''
  s_cmp_lg_u32 s6, 0
  s_cbranch_scc1 L_A_nors0
  s_cmp_ge_u32 s2, 192
  s_cbranch_scc1 L_A_nors0
  v_min_u32 v11, 5, v6
  v_add_u32 v11, s90, v11             ; col
  v_min_u32 v11, 511, v11
  v_lshrrev_b32 v12, 2, v11
  v_lshlrev_b32 v12, 4, v12
  s_lshl_b32 s64, s92, 13
  s_add_u32 s64, s64, {WS_MOD}
  s_add_u32 s65, s64, {384*16}
  s_lshl_b32 s66, s92, 10
  v_lshlrev_b32 v13, 1, v11
  buffer_load_ushort v160, v13, s[48:51], s66 offen''')
    gpoll([('  buffer_load_dwordx4 v[16:19], v12, s[8:11], s64 offen sc1', 18),
           ('  buffer_load_dwordx4 v[20:23], v12, s[8:11], s65 offen sc1', 22)], sentinel=False)
    a('''
  v_and_b32 v13, 2, v11
  v_cmp_ne_u32 vcc, 0, v13
  v_cndmask_b32 v16, v16, v17, vcc
  v_cndmask_b32 v20, v20, v21, vcc
  v_and_b32 v13, 1, v11
  v_lshlrev_b32 v13, 4, v13
  v_lshrrev_b32 v16, v13, v16
  v_lshrrev_b32 v20, v13, v20
  v_lshlrev_b32 v161, 16, v16         ; ga
  v_lshlrev_b32 v162, 16, v20         ; gb
  v_lshlrev_b32 v160, 16, v160        ; x
  v_mov_b32 v12, 0x3f80
  v_mov_b32 v13, 0x3f800000''')
    for q in range(4):
        a(f'''
  v_cmp_eq_u32 vcc, {2*q}, v6
  v_cndmask_b32 v{164+q}, 0, v12, vcc
  v_cmp_eq_u32 vcc, {2*q+1}, v6
  v_cndmask_b32 v{164+q}, v{164+q}, v13, vcc''')
    a('L_A_nors0:')
    wait_cnt(C_S3D, 4, sleep=2)
    a(f'''
  s_cmp_lt_u32 s5, 18
  s_cbranch_scc1 L_A_noffn0
  v_lshrrev_b32 v12, 1, v0
  v_lshlrev_b32 v12, 4, v12           ; (2L>>2)*16''')
    gpoll([(f'  s_mov_b32 s66, {WS_MOD + (0*512 + 256)*16}\n  buffer_load_dwordx4 v[16:19], v12, s[8:11], s66 offen sc1', 18),
           (f'  s_mov_b32 s66, {WS_MOD + (1*512 + 256)*16}\n  buffer_load_dwordx4 v[20:23], v12, s[8:11], s66 offen sc1', 22),
           (f'  s_mov_b32 s66, {WS_MOD + (0*512 + 128)*16}\n  buffer_load_dwordx4 v[24:27], v12, s[8:11], s66 offen sc1', 26),
           (f'  s_mov_b32 s66, {WS_MOD + (1*512 + 128)*16}\n  buffer_load_dwordx4 v[28:31], v12, s[8:11], s66 offen sc1', 30)],
          sentinel=False)
    a(f'''
  v_and_b32 v13, 1, v0
  v_cmp_ne_u32 vcc, 0, v13
  v_cndmask_b32 v16, v16, v17, vcc
  v_cndmask_b32 v20, v20, v21, vcc
  v_cndmask_b32 v24, v24, v25, vcc
  v_cndmask_b32 v28, v28, v29, vcc
  v_lshlrev_b32 v168, 16, v16
  v_and_b32 v169, 0xffff0000, v16
  v_lshlrev_b32 v170, 16, v20
  v_and_b32 v171, 0xffff0000, v20
  v_add_f32 v168, 1.0, v168
  v_add_f32 v169, 1.0, v169
  v_add_f32 v170, 1.0, v170
  v_add_f32 v171, 1.0, v171
  v_cvt_pk_bf16_f32 v16, v168, v169
  v_cvt_pk_bf16_f32 v20, v170, v171
  v_lshlrev_b32 v168, 16, v16
  v_and_b32 v169, 0xffff0000, v16
  v_lshlrev_b32 v170, 16, v20
  v_and_b32 v171, 0xffff0000, v20
  v_lshlrev_b32 v13, 2, v0
  ds_write_b32 v13, v16 offset:{L_YIMG1}
  ds_write_b32 v13, v20 offset:{L_YIMG1 + 1040}
  ds_write_b32 v13, v24 offset:{L_YIMG1 + 2080}
  ds_write_b32 v13, v28 offset:{L_YIMG1 + 3120}''')
    signal(C_Y1)
    a('L_A_noffn0:')
    stamp(6)
    a(f'''
  s_lshl_b32 s64, s6, 11
  v_lshlrev_b32 v11, 4, v1
  v_add_u32 v11, s64, v11             ; (v*128+l)*16
  s_add_u32 s93, s89, 8192
  s_add_u32 s94, s89, 16384
  v_lshrrev_b32 v12, 2, v1
  v_mul_u32_u24 v12, 144, v12
  v_and_b32 v13, 3, v1
  v_lshl_add_u32 v12, v13, 5, v12
  s_mul_i32 s64, s6, {32*144}
  v_add_u32 v12, s64, v12
  v_lshrrev_b32 v13, 2, v6
  v_lshl_add_u32 v13, v7, 3, v13
  v_mul_u32_u24 v13, 144, v13
  v_and_b32 v14, 3, v6
  v_lshl_add_u32 v13, v14, 3, v13
  v_add_u32 v13, s64, v13
  v_lshrrev_b32 v14, 2, v1
  v_lshlrev_b32 v14, 1, v14
  s_lshl_b32 s64, s6, 7
  v_add_u32 v14, s64, v14
  v_and_b32 v172, 1, v6
  v_lshlrev_b32 v172, 6, v172
  v_lshl_add_u32 v172, v7, 4, v172
  v_add_u32 v172, s64, v172
  s_lshl_b32 s64, s6, 8
  v_lshl_add_u32 v173, v6, 2, s64
  s_lshl_b32 s65, s6, 3
  v_mov_b32 v174, s65
  v_lshrrev_b32 v175, 5, v1           ; b
  v_and_b32 v176, 31, v1
  v_lshlrev_b32 v176, 3, v176
  v_lshl_add_u32 v176, v175, 9, v176
  v_lshlrev_b32 v175, 4, v175
  v_lshl_add_u32 v177, v1, 2, s64
  v_and_b32 v178, 1, v6
  v_lshlrev_b32 v178, 7, v178
  v_lshl_add_u32 v178, v7, 4, v178
  v_add_u32 v178, s64, v178
  s_lshl_b32 s64, s6, 6
  v_lshl_add_u32 v179, v6, 2, s64
  v_and_b32 v180, 1, v6
  v_lshlrev_b32 v180, 8, v180
  v_lshl_add_u32 v180, v7, 4, v180
  v_lshl_add_u32 v5, v6, 2, v7
  v_mul_u32_u24 v5, {6*4096}, v5
  s_mul_i32 s95, s6, {48*4096}
  s_lshl_b32 s64, s2, 4
  s_add_u32 s95, s95, s64
  s_add_u32 s95, s95, {WS_R1}''')
    prep_granule_tags(GLA)
    sb = {0: 's89', 1: 's93', 2: 's94'}
    loads = []
    for z in range(2):
        for i in range(3):
            r = 16 + 12 * z + 4 * i
            loads.append((f'  buffer_load_dwordx4 v[{r}:{r+3}], v11, s[8:11], {sb[i]} offen offset:{1024*z} sc1', r + 3))
    gpoll(loads)
    stamp(7)
    a(f'''
  v_mov_b32 v19, v24
  v_mov_b32 v23, v25
  v_mov_b32 v31, v36
  v_mov_b32 v35, v37
  ds_write_b128 v12, v[16:19] offset:{L_CSCR}
  ds_write_b128 v12, v[20:23] offset:{L_CSCR + 16}
  ds_write_b128 v12, v[28:31] offset:{L_CSCR + 16*144}
  ds_write_b128 v12, v[32:35] offset:{L_CSCR + 16*144 + 16}
  v_max_f32 v40, v26, v38''')
    xred(40, 41, 'v_max_f32', ['r4', 'r8', 'p16', 'p32'])
    a(f'''
  v_sub_f32 v26, v26, v40
  v_sub_f32 v38, v38, v40
  v_exp_f32 v26, v26
  v_exp_f32 v38, v38
  v_cvt_pk_bf16_f32 v42, v26, v38
  v_add_f32 v41, v26, v38
  v_lshlrev_b32 v43, 16, v42
  v_and_b32 v44, 0xffff0000, v42
  v_sub_f32 v43, v26, v43
  v_sub_f32 v44, v38, v44
  v_cvt_pk_bf16_f32 v43, v43, v44
  ds_write_b16 v14, v42 offset:{L_WSCR}
  ds_write_b16_d16_hi v14, v42 offset:{L_WSCR + 32}
  ds_write_b16 v14, v43 offset:{L_WSCR + 64}
  ds_write_b16_d16_hi v14, v43 offset:{L_WSCR + 96}
  s_waitcnt lgkmcnt(0)
  ds_read_b128 v[44:47], v172 offset:{L_WSCR}''')
    for nt in range(4):
        a(f'  ds_read_b64_tr_b16 v[{16+4*nt}:{17+4*nt}], v13 offset:{L_CSCR + 32*nt}')
        a(f'  ds_read_b64_tr_b16 v[{18+4*nt}:{19+4*nt}], v13 offset:{L_CSCR + 32*nt + 4*144}')
    xred(41, 42, 'v_add_f32', ['r4', 'r8', 'p16', 'p32'])
    for nt in range(4):
        a(f'  s_waitcnt lgkmcnt({6-2*nt})')
        mfma(48 + 4 * nt, 44, 16 + 4 * nt, True)
    a('  s_mov_b64 exec, 0xffff')
    for nt in range(4):
        a(f'  v_add_f32 v{48+4*nt}, v{48+4*nt}, v{49+4*nt}')
        a(f'  ds_write_b32 v173, v{48+4*nt} offset:{L_XCH + 64*nt}')
    a(f'''
  ds_write_b64 v174, v[40:41] offset:{L_XST}
  s_mov_b64 exec, -1''')
    tbar(C_A3)
    a(f'''
  ds_read_b128 v[16:19], v175 offset:{L_XST}
  ds_read_b64 v[20:21], v176 offset:{L_XCH}
  ds_read_b64 v[22:23], v176 offset:{L_XCH + 256}
  s_waitcnt lgkmcnt(2)
  v_max_f32 v24, v16, v18
  v_sub_f32 v16, v16, v24
  v_sub_f32 v18, v18, v24
  v_exp_f32 v16, v16
  v_exp_f32 v18, v18
  v_mul_f32 v17, v17, v16
  v_fmac_f32 v17, v19, v18
  v_rcp_f32 v17, v17
  v_mul_f32 v16, v16, v17
  v_mul_f32 v18, v18, v17
  s_waitcnt lgkmcnt(0)
  v_mul_f32 v20, v20, v16
  v_mul_f32 v21, v21, v16
  v_fmac_f32 v20, v22, v18
  v_fmac_f32 v21, v23, v18
  v_cvt_pk_bf16_f32 v20, v20, v21
  ds_write_b32 v177, v20 offset:{L_CPRIV}
  s_waitcnt lgkmcnt(0)
  ds_read_b128 v[16:19], v178 offset:{L_CPRIV}
  ds_read_b128 v[20:23], v178 offset:{L_CPRIV + 64}
  s_waitcnt lgkmcnt(1)''')
    mfma(24, 16, 240, True)
    mfma(28, 16, 244, True)
    a('  s_waitcnt lgkmcnt(0)')
    mfma(24, 20, 248, False)
    mfma(28, 20, 252, False)
    a(f'''
  s_mov_b64 exec, 0xffff
  v_cvt_pk_bf16_f32 v24, v24, v28
  v_cvt_pk_bf16_f32 v25, v25, v29
  ds_write_b32 v179, v24 offset:{L_PCTX}
  ds_write_b32 v179, v25 offset:{L_PCTX + 256}
  s_mov_b64 exec, -1''')
    tbar(C_A4)
    for s in range(4):
        a(f'  ds_read_b128 v[{48+4*s}:{51+4*s}], v180 offset:{L_PCTX + 64*s}')
    for s in range(4):
        a(f'  s_waitcnt lgkmcnt({3-s})')
        for i8 in range(8):
            mfma(16 + 4 * i8, WQF[s] + 4 * i8, 48 + 4 * s, s == 0)
    publish_rs(16, GLA, 95, 4096)
    stamp(8)
    a(f'''
  s_cmp_lg_u32 s6, 0
  s_cbranch_scc1 L_A_nors1
  s_cmp_ge_u32 s2, 192
  s_cbranch_scc1 L_A_nors1
  v_lshlrev_b32 v11, 4, v1
  s_lshl_b32 s93, s2, 12
  s_add_u32 s93, s93, {WS_R1}
  s_lshl_b32 s94, s92, 9
  s_add_u32 s94, s94, s90
  s_lshl_b32 s94, s94, 3
  s_add_u32 s94, s94, {WS_AG}
  v_lshlrev_b32 v12, 3, v1
  v_mov_b32 v183, s88''')
    gpoll([(f'  buffer_load_dwordx4 v[{16+4*i}:{19+4*i}], v11, s[8:11], s93 offen offset:{1024*i} sc1', 19 + 4 * i) for i in range(4)])
    for i in range(4):
        a(f'  v_mov_b32 v{19+4*i}, 0')
    for i in range(4):
        mfma(32, 16 + 4 * i, 164, i == 0)
    a('''
  v_add_f32 v32, v32, v33
  v_add_f32 v34, v34, v35
  v_add_f32 v32, v32, v34''')
    xred(32, 33, 'v_add_f32', ['p16', 'p32'])
    a('''
  v_fma_f32 v182, v161, v32, v160     ; x1
  v_cmp_gt_u32 vcc, s91, v1
  s_and_saveexec_b64 s[66:67], vcc
  buffer_store_dwordx2 v[182:183], v12, s[8:11], s94 offen sc1
  s_mov_b64 exec, -1
L_A_nors1:''')
    stamp(9)
    a(f'''
  s_cmp_lt_u32 s5, 18
  s_cbranch_scc1 L_A_noffn1
  v_lshlrev_b32 v13, 2, v0
  s_lshl_b32 s93, s6, 4
  v_mov_b32 v14, s93''')

    def agcheck(i, tr):
        a(f'''
  v_cmp_ne_u32_e64 s[{70+2*i}:{71+2*i}], s88, v{tr}
  v_cmp_ne_u32_e64 s[66:67], s88, v{tr-2}
  s_or_b64 s[{70+2*i}:{71+2*i}], s[{70+2*i}:{71+2*i}], s[66:67]''')
    gpoll([(f'  s_mov_b32 s66, {WS_AG}\n  buffer_load_dwordx4 v[16:19], v10, s[8:11], s66 offen sc1', 19),
           (f'  s_mov_b32 s66, {WS_AG + 4096}\n  buffer_load_dwordx4 v[20:23], v10, s[8:11], s66 offen sc1', 23)],
          tagcheck=agcheck, sentinel=False)
    stamp(10)
    a(f'''
  v_mul_f32 v24, v16, v168
  v_mul_f32 v25, v18, v169
  v_mul_f32 v26, v20, v170
  v_mul_f32 v27, v22, v171
  v_cvt_pk_bf16_f32 v28, v24, v25
  v_cvt_pk_bf16_f32 v29, v26, v27
  ds_write_b32 v13, v28 offset:{L_YIMG2}
  ds_write_b32 v13, v29 offset:{L_YIMG2 + 1040}
  v_lshlrev_b32 v30, 16, v28
  v_and_b32 v31, 0xffff0000, v28
  v_lshlrev_b32 v32, 16, v29
  v_and_b32 v33, 0xffff0000, v29
  v_sub_f32 v24, v24, v30
  v_sub_f32 v25, v25, v31
  v_sub_f32 v26, v26, v32
  v_sub_f32 v27, v27, v33
  v_cvt_pk_bf16_f32 v28, v24, v25
  v_cvt_pk_bf16_f32 v29, v26, v27
  ds_write_b32 v13, v28 offset:{L_YIMG2 + 2080}
  ds_write_b32 v13, v29 offset:{L_YIMG2 + 3120}''')
    signal(C_Y2)
    a('''
  v_add_f32 v24, v16, v18
  v_mul_f32 v25, v16, v16
  v_fmac_f32 v25, v18, v18
  v_add_f32 v26, v20, v22
  v_mul_f32 v27, v20, v20
  v_fmac_f32 v27, v22, v22''')
    for st in ['r1', 'r2', 'r4', 'r8']:
        for v in range(24, 28):
            xred(v, 28, 'v_add_f32', [st])
    for st in ['p16', 'p32']:
        for v in range(24, 28):
            xred(v, v + 4, 'v_add_f32', [st])
    a(f'''
  s_mov_b64 exec, 1
  ds_write_b128 v14, v[24:27] offset:{L_YST}
  s_mov_b64 exec, -1''')
    signal(C_F2)
    a('L_A_noffn1:')
    srd(48, 40, 2048)
    a(f'''
  s_cmp_lg_u32 s6, 0
  s_cbranch_scc1 L_done
  s_cmp_ge_u32 s2, 192
  s_cbranch_scc1 L_done
  s_lshl_b32 s93, s2, 11
  s_add_u32 s93, s93, {WS_R2}
  s_lshl_b32 s94, s92, 9
  s_add_u32 s94, s94, s90
  s_lshl_b32 s94, s94, 1
  v_lshlrev_b32 v12, 1, v1
  v_mov_b32 v20, 0
  v_mov_b32 v21, 0
  v_mov_b32 v22, 0''')
    gpoll([(f'  buffer_load_dwordx4 v[{16+4*i}:{19+4*i}], v11, s[8:11], s93 offen offset:{1024*i} sc1', 19 + 4 * i) for i in range(2)],
          init_masks={1: (1 << 48) - 1})
    stamp(11)
    for i in range(2):
        a(f'  v_mov_b32 v{19+4*i}, 0')
    for i in range(2):
        mfma(32, 16 + 4 * i, 164, i == 0)
    a('''
  v_add_f32 v32, v32, v33
  v_add_f32 v34, v34, v35
  v_add_f32 v32, v32, v34''')
    xred(32, 33, 'v_add_f32', ['p16', 'p32'])
    a('''
  v_fma_f32 v32, v162, v32, v182
  v_cvt_pk_bf16_f32 v32, v32, v32
  v_cmp_gt_u32 vcc, s91, v1
  s_and_saveexec_b64 s[66:67], vcc
  buffer_store_short v32, v12, s[48:51], s94 offen
  s_mov_b64 exec, -1
  s_branch L_done''')

    a('L_B:')
    a('''
  s_and_b32 s46, s5, 1
  s_lshr_b32 s64, s5, 2
  s_lshl_b32 s64, s64, 1
  s_add_u32 s46, s46, s64
  s_lshl_b32 s47, s46, 3
  s_add_u32 s47, s47, s4
  s_lshr_b32 s89, s5, 1
  s_and_b32 s89, s89, 1
  s_xor_b32 s89, s89, 1
  v_and_b32 v10, 255, v0
  v_mov_b32 v60, 0
  s_mov_b32 s90, 0
  s_cmp_eq_u32 s89, 0
  s_cbranch_scc1 L_B_nos0a
  s_cmp_ge_u32 s46, 12
  s_cbranch_scc1 L_B_nos0a''')
    srd(12, 38, 3 << 20)
    srd(48, 36, 2048)
    srd(52, 16, 2048)
    srd(56, 42, 256)
    a(f'''
  s_cmp_ge_u32 s46, 4
  s_cbranch_scc1 L_B_noncrit
  s_mov_b32 s90, 1
  s_lshl_b32 s91, s4, 2
  s_add_u32 s91, s91, s46             ; t
  s_lshl_b32 s92, s91, 4              ; o1
  s_add_u32 s93, s92, 512             ; o2
  ; epoch
  s_memrealtime s[66:67]
  v_mov_b32 v16, 0
  v_mov_b32 v17, 0
  v_mov_b32 v18, 0
  v_mov_b32 v19, 0
  v_lshlrev_b32 v11, 4, v10
  s_lshl_b32 s64, s91, 12
  s_add_u32 s64, s64, {WS_QABS}
  buffer_store_dwordx4 v[16:19], v11, s[8:11], s64 offen sc1
  s_cmp_ge_u32 s91, 4
  s_cbranch_scc1 L_B_nomclr
  s_lshl_b32 s64, s91, 12
  s_add_u32 s64, s64, {WS_MOD}
  buffer_store_dwordx4 v[16:19], v11, s[8:11], s64 offen sc1
L_B_nomclr:
  s_waitcnt lgkmcnt(0)
  s_or_b32 s94, s66, 1
  s_cmp_lg_u32 s6, 0
  s_cbranch_scc1 L_B_s0ld
  s_lshl_b32 s64, s91, 2
  v_mov_b32 v12, s64
  v_mov_b32 v13, s94
  s_mov_b64 exec, 1
  buffer_store_dword v13, v12, s[56:59], 0 offen sc1
  s_mov_b64 exec, -1
  s_branch L_B_s0ld
L_B_noncrit:
  s_mov_b32 s90, 2
  s_lshl_b32 s91, s4, 3
  s_add_u32 s91, s91, s46
  s_sub_u32 s91, s91, 4               ; t'
  s_lshl_b32 s92, s91, 5
  s_add_u32 s92, s92, 1024
  s_add_u32 s93, s92, 16
L_B_s0ld:
  v_lshrrev_b32 v11, 5, v1            ; b
  v_and_b32 v12, 31, v1
  v_lshlrev_b32 v13, 10, v11
  v_lshl_add_u32 v14, v12, 3, v13
  s_lshl_b32 s64, s6, 8
  buffer_load_dwordx2 v[16:17], v14, s[48:51], s64 offen
  v_lshl_add_u32 v14, v12, 5, v13
  buffer_load_dwordx4 v[20:23], v14, s[52:55], 0 offen
  buffer_load_dwordx4 v[24:27], v14, s[52:55], 0 offen offset:16
  s_and_b32 s64, s92, 511
  s_lshl_b32 s64, s64, 1
  v_lshl_add_u32 v14, v6, 1, v13
  buffer_load_ushort v28, v14, s[52:55], s64 offen
  v_mul_u32_u24 v8, {8*6144}, v7
  v_and_b32 v9, 7, v1
  v_lshl_add_u32 v8, v9, 2, v8
  v_and_b32 v9, 8, v1
  v_cmp_ne_u32 vcc, 0, v9
  v_mov_b32 v9, s92
  v_mov_b32 v14, s93
  v_cndmask_b32 v9, v9, v14, vcc
  v_lshl_add_u32 v8, v9, 1, v8
  s_mul_i32 s64, s6, {128*6144}''')
    for s in range(4):
        for jj in range(8):
            a(f'  buffer_load_dword v{64+8*s+jj}, v8, s[12:15], s64 offen')
            a('  s_add_u32 s64, s64, %d' % (6144 if jj < 7 else 6144 * 25))
    a('''
L_B_nos0a:
  s_barrier
  s_cmp_eq_u32 s90, 0
  s_cbranch_scc1 L_B_nos0b
  s_waitcnt vmcnt(35)
  v_lshlrev_b32 v30, 16, v16
  v_and_b32 v31, 0xffff0000, v16
  v_lshlrev_b32 v32, 16, v17
  v_and_b32 v33, 0xffff0000, v17''')
    a(f'  s_mov_b32 s64, {f2u(-LOG2E)}')
    for k in range(4):
        a(f'  v_mul_f32 v{34+k}, s64, v{30+k}')
    for k in range(4):
        a(f'  v_exp_f32 v{34+k}, v{34+k}')
    for k in range(4):
        a(f'  v_add_f32 v{34+k}, 1.0, v{34+k}')
    for k in range(4):
        a(f'  v_rcp_f32 v{34+k}, v{34+k}')
    for k in range(4):
        a(f'  v_mul_f32 v{30+k}, v{30+k}, v{34+k}')
    a(f'''
  v_cvt_pk_bf16_f32 v16, v30, v31
  v_cvt_pk_bf16_f32 v17, v32, v33
  v_lshlrev_b32 v14, 3, v10
  ds_write_b64 v14, v[16:17] offset:{L_SCP}
  v_and_b32 v14, 1, v6
  v_lshlrev_b32 v14, 8, v14
  v_lshl_add_u32 v14, v7, 4, v14
  s_lshl_b32 s64, s6, 9
  v_add_u32 v14, s64, v14
  s_waitcnt lgkmcnt(0)''')
    for s in range(4):
        a(f'  ds_read_b128 v[{32+4*s}:{35+4*s}], v14 offset:{L_SCP + 64*s}')
    a('  s_waitcnt vmcnt(32)')
    for k in range(8):
        a(f'  v_lshlrev_b32 v{128+2*k}, 16, v{20+k}\n  v_and_b32 v{129+2*k}, 0xffff0000, v{20+k}')
    a('  v_add_f32 v56, v128, v129')
    for k in range(2, 16):
        a(f'  v_add_f32 v56, v56, v{128+k}')
    xred(56, 57, 'v_add_f32', ['r1', 'r2', 'r4', 'r8', 'p16'])
    a(f'  v_mul_f32 v56, {f2u(1.0/512)}, v56')
    a('  v_mov_b32 v57, 0')
    for k in range(16):
        a(f'  v_sub_f32 v{128+k}, v{128+k}, v56\n  v_fmac_f32 v57, v{128+k}, v{128+k}')
    xred(57, 58, 'v_add_f32', ['r1', 'r2', 'r4', 'r8', 'p16'])
    a(f'''
  v_mov_b32 v58, {f2u(1e-5)}
  v_fmac_f32 v58, {f2u(1.0/512)}, v57
  v_rsq_f32 v57, v58
  v_lshlrev_b32 v28, 16, v28
  v_sub_f32 v28, v28, v56
  v_mul_f32 v28, v28, v57''')
    for s in range(4):
        a(f'  s_waitcnt vmcnt({24-8*s})')
        perm2(64 + 8 * s, 96 + 8 * s)
    a('  s_waitcnt lgkmcnt(0)')
    for s in range(4):
        mfma(48, 32 + 4 * s, 96 + 8 * s, s == 0)
        mfma(52, 32 + 4 * s, 100 + 8 * s, s == 0)
    a(f'''
  s_lshl_b32 s64, s6, 8
  v_lshl_add_u32 v14, v6, 3, s64
  s_mov_b64 exec, 0xffff
  ds_write_b64 v14, v[48:49] offset:{L_S0RED}
  ds_write_b64 v14, v[52:53] offset:{L_S0RED + 128}
  s_mov_b64 exec, -1''')
    signal(C_S0)
    a('''
  s_cmp_lg_u32 s6, 0
  s_cbranch_scc1 L_B_nos0b''')
    a('''
  v_and_b32 v14, 1, v1
  v_lshlrev_b32 v14, 7, v14
  v_bfe_u32 v13, v1, 1, 4             ; mat*8 + n2
  v_lshl_add_u32 v14, v13, 3, v14
  v_lshl_add_u32 v14, v11, 2, v14
  v_xor_b32 v13, 64, v14''')
    wait_cnt(C_S0, 4)
    for uu in range(4):
        a(f'  ds_read_b32 v{32+uu}, v14 offset:{L_S0RED + 256*uu}')
        a(f'  ds_read_b32 v{36+uu}, v13 offset:{L_S0RED + 256*uu}')
    a(f'''
  s_waitcnt lgkmcnt(0)
  v_add_f32 v32, v32, v33
  v_add_f32 v34, v34, v35
  v_add_f32 v36, v36, v37
  v_add_f32 v38, v38, v39
  v_add_f32 v32, v32, v34             ; own
  v_add_f32 v36, v36, v38             ; other
  s_cmp_eq_u32 s90, 2
  s_cbranch_scc1 L_B_s0pack
  v_add_f32 v36, 1.0, v36
  v_fmac_f32 v32, v28, v36
L_B_s0pack:
  v_mov_b32_dpp v33, v32 quad_perm:[1,1,3,3] row_mask:0xf bank_mask:0xf
  v_cvt_pk_bf16_f32 v56, v32, v33
  v_mov_b32_dpp v57, v56 quad_perm:[2,2,2,2] row_mask:0xf bank_mask:0xf
  s_cmp_eq_u32 s90, 2
  s_cbranch_scc1 L_B_s0nc
  v_mov_b32 v58, s94
  v_not_b32 v59, v58
  v_lshlrev_b32 v60, 11, v11
  v_lshl_add_u32 v60, v6, 2, v60      ; (cidx/4)*16 = cidx*4 for cidx%4==0
  s_lshl_b32 s64, s91, 6
  s_mov_b32 exec_lo, 0x00001111
  s_mov_b32 exec_hi, 0x00001111
  buffer_store_dwordx4 v[56:59], v60, s[8:11], s64 offen sc1
  s_mov_b64 exec, -1
  s_branch L_B_nos0b
L_B_s0nc:
  v_mov_b32 v58, s88
  v_mov_b32 v59, s88
  v_lshlrev_b32 v60, 13, v11
  v_lshl_add_u32 v60, v12, 2, v60     ; b*8192 + (lane&31)*4
  s_lshl_b32 s95, s91, 7
  s_add_u32 s95, s95, {WS_MOD}
L_B_nos0b:''')
    stamp(1)
    srd(12, 18, 16 << 20)
    a(f'''
  v_lshlrev_b32 v8, 4, v1
  s_lshl_b32 s64, s47, 17
  s_lshl_b32 s65, s6, 15
  s_add_u32 s64, s64, s65
  s_mul_i32 s65, s6, {32*ROWS}
  s_add_u32 s65, s65, {L_CKV}''')
    for r in range(32):
        a(f'''
  s_mov_b32 m0, s65
  s_add_u32 s65, s65, {ROWS}
  buffer_load_dwordx4 v8, s[12:15], s64 offen{NT_CKV} lds
  s_add_u32 s64, s64, 1024''')
    a(f'''
  v_mul_u32_u24 v9, {ROWS}, v6
  v_lshl_add_u32 v9, v7, 4, v9
  s_mul_i32 s65, s6, {32*ROWS}
  s_add_u32 s65, s65, {L_CKV}
  v_add_u32 v9, s65, v9
  v_lshrrev_b32 v11, 2, v6
  v_lshl_add_u32 v11, v7, 2, v11
  v_mul_u32_u24 v11, {ROWS}, v11
  v_and_b32 v12, 3, v6
  v_lshl_add_u32 v11, v12, 3, v11
  s_lshl_b32 s65, s6, 8
  s_add_u32 s65, s65, {L_CKV}
  v_add_u32 v11, s65, v11
  v_add_u32 v12, {64*ROWS}, v11       ; (ku>=2)
  v_lshlrev_b32 v13, 4, v10           ; L*16
  v_lshlrev_b32 v14, 3, v10           ; L*8
  s_lshr_b32 s64, s47, 6
  s_lshl_b32 s64, s64, 1
  s_add_u32 s64, s64, s89
  s_lshl_b32 s64, s64, 15
  s_add_u32 s91, s64, {WS_QABS}''')
    stamp(2)
    for kt in range(2):
        a(f'  s_waitcnt vmcnt({16-16*kt})')
        for s in range(16):
            r = 64 + 64 * kt + 4 * s
            a(f'  ds_read_b128 v[{r}:{r+3}], v9 offset:{kt*16*ROWS + 64*s}')
    stamp(3)
    wait_cnt(C_A1, 4, sleep=1)
    a('''
  s_cmp_lg_u32 s90, 2
  s_cbranch_scc1 L_B_nomod
  s_cmp_lg_u32 s6, 0
  s_cbranch_scc1 L_B_nomod
  s_mov_b32 exec_lo, 0x11111111
  s_mov_b32 exec_hi, 0x11111111
  buffer_store_dwordx4 v[56:59], v60, s[8:11], s95 offen sc1
  s_mov_b64 exec, -1
L_B_nomod:''')
    a(f'''
  v_mul_u32_u24 v5, 0x30000, v6
  v_lshl_add_u32 v5, v7, 4, v5
  s_mul_i32 s92, s89, {16*196608}
  s_lshl_b32 s64, s47, 6
  s_add_u32 s92, s92, s64
  s_mul_i32 s64, s6, {6*8192}
  s_add_u32 s92, s92, s64
  s_add_u32 s92, s92, {WS_P3}
  v_lshlrev_b32 v58, 4, v6
  s_lshl_b32 s64, s6, 2
  v_add_u32 v59, s64, v58
  s_lshl_b32 s64, s6, 10
  v_add_u32 v60, s64, v8
  s_mov_b32 s93, {f2u(SCALE)}''')
    gpoll([(f'  s_add_u32 s66, s91, {4096*i}\n  buffer_load_dwordx4 v[{16+4*i}:{19+4*i}], v13, s[8:11], s66 offen sc1', 18 + 4 * i) for i in range(8)])
    stamp(4)
    for i in range(8):
        a(f'  ds_write_b64 v14, v[{16+4*i}:{17+4*i}] offset:{L_QIMG + 2048*i}')
    tbar(C_BQ)
    for s in range(16):
        a(f'  ds_read_b128 v[{192+4*s}:{195+4*s}], v8 offset:{L_QIMG + 1024*s}')
    PVF = {}

    def trr(s_, kt):
        r = 64 + 64 * kt + 4 * s_
        q = 2 * s_ + kt
        t8, ku = q & 7, q >> 3
        PVF[(t8, ku)] = r
        base = 'v11' if ku < 2 else 'v12'
        off = (ku & 1) * 32 * ROWS + 32 * t8
        a(f'  ds_read_b64_tr_b16 v[{r}:{r+1}], {base} offset:{off}')
        a(f'  ds_read_b64_tr_b16 v[{r+2}:{r+3}], {base} offset:{off + 16*ROWS}')
    for s in range(16):
        if s < 8:
            a(f'  s_waitcnt lgkmcnt({15 - s})')
        if s == 8:
            a('  s_waitcnt lgkmcnt(0)')
        for kt in range(2):
            r = 64 + 64 * kt + 4 * s
            mfma(48 + 4 * kt, r, 192 + 4 * s, s == 0)
        if s >= 8:
            for kt in range(2):
                trr(s - 8, kt)
            for kt in range(2):
                trr(s, kt)
    a('''
  v_max3_f32 v56, v48, v49, v50
  v_max3_f32 v56, v56, v51, v52
  v_max3_f32 v56, v56, v53, v54
  v_max_f32 v56, v56, v55''')
    xred(56, 57, 'v_max_f32', ['p16', 'p32'])
    a(f'''
  ds_write_b32 v59, v56 offset:{L_SMAX}''')
    tbar(C_BM)
    a(f'''
  ds_read_b128 v[16:19], v58 offset:{L_SMAX}
  s_waitcnt lgkmcnt(0)
  v_max3_f32 v56, v16, v17, v18
  v_max_f32 v56, v56, v19
  v_mul_f32 v56, s93, v56''')
    for k in range(8):
        a(f'  v_fma_f32 v{48+k}, v{48+k}, s93, -v56')
    for k in range(8):
        a(f'  v_exp_f32 v{48+k}, v{48+k}')
    for k in range(4):
        a(f'  v_cvt_pk_bf16_f32 v{16+k}, v{48+2*k}, v{49+2*k}')
    a(f'  ds_write_b128 v60, v[16:19] offset:{L_PIMG}')
    a('''
  v_add_f32 v57, v48, v49
  v_add_f32 v61, v50, v51
  v_add_f32 v62, v52, v53
  v_add_f32 v63, v54, v55
  v_add_f32 v57, v57, v61
  v_add_f32 v62, v62, v63
  v_add_f32 v57, v57, v62''')
    xred(57, 61, 'v_add_f32', ['p16', 'p32'])
    a(f'  ds_write_b32 v59, v57 offset:{L_SSUM}')
    tbar(C_BP)
    for ku in range(4):
        a(f'  ds_read_b128 v[{16+4*ku}:{19+4*ku}], v8 offset:{L_PIMG + 1024*ku}')
    a(f'  ds_read_b128 v[32:35], v58 offset:{L_SSUM}')
    for ku in range(4):
        a(f'  s_waitcnt lgkmcnt({4-ku})')
        for t8 in range(8):
            mfma(192 + 4 * t8, PVF[(t8, ku)], 16 + 4 * ku, ku == 0)
    signal(C_S3D)
    a('''
  v_add_f32 v32, v32, v33
  v_add_f32 v34, v34, v35
  v_add_f32 v32, v32, v34
  v_rcp_f32 v33, v32
  v_log_f32 v34, v32
  v_add_f32 v34, v34, v56''')
    for sl in range(2):
        G = 224 + 12 * sl
        for k in range(16):
            a(f'  v_mul_f32 v{192+16*sl+k}, v{192+16*sl+k}, v33')
        dst = {0: G, 1: G + 1, 2: G + 2, 3: G + 8, 4: G + 4, 5: G + 5, 6: G + 6, 7: G + 9}
        for p in range(8):
            a(f'  v_cvt_pk_bf16_f32 v{dst[p]}, v{192+16*sl+2*p}, v{193+16*sl+2*p}')
        a(f'''
  v_mov_b32 v{G+3}, s88
  v_mov_b32 v{G+7}, s88
  v_mov_b32 v{G+10}, v34
  v_mov_b32 v{G+11}, s88''')
        for i in range(3):
            a(f'  buffer_store_dwordx4 v[{G+4*i}:{G+4*i+3}], v5, s[8:11], s92 offen sc1')
            a('  s_add_u32 s92, s92, 8192')
    stamp(5)
    a('''
  s_cmp_lt_u32 s5, 18
  s_cbranch_scc1 L_done
  s_mul_i32 s46, s4, 14
  s_add_u32 s46, s46, s5
  s_sub_u32 s46, s46, 18              ; fs''')
    srd(12, 30, 512 * 3584)
    srd(48, 32, 512 * 3584)
    srd(52, 34, 1792 * 1024)
    a(f'''
  v_mul_u32_u24 v9, {8*3584}, v7
  v_and_b32 v11, 7, v1
  v_lshl_add_u32 v9, v11, 2, v9
  s_mul_i32 s65, s6, {128*3584}
  s_lshl_b32 s64, s46, 5
  s_add_u32 s65, s65, s64''')
    for mat in range(2):
        m = 0x00ff00ff if mat == 0 else 0xff00ff00
        a(f'  s_mov_b32 exec_lo, {m}\n  s_mov_b32 exec_hi, {m}\n  s_mov_b32 s64, s65')
        for s in range(4):
            for jj in range(8):
                a(f'  buffer_load_dword v{64+8*s+jj}, v9, s[{12 if mat == 0 else 48}:{15 if mat == 0 else 51}], s64 offen{NT_F}')
                a('  s_add_u32 s64, s64, %d' % (3584 if jj < 7 else 3584 * 25))
    a(f'''
  s_mov_b64 exec, -1
  v_and_b32 v11, 1, v7
  v_lshlrev_b32 v11, 13, v11
  v_lshl_add_u32 v11, v6, 4, v11
  s_lshl_b32 s64, s46, 14
  s_lshl_b32 s65, s6, 8
  s_add_u32 s64, s64, s65''')
    for jj in range(8):
        a(f'  buffer_load_dwordx4 v[{128+4*jj}:{131+4*jj}], v11, s[52:55], s64 offen offset:{(jj&3)*1024}{NT_F}')
        if jj == 3:
            a('  s_add_u32 s64, s64, 4096')
    a(f'''
  v_and_b32 v11, 3, v6
  v_mul_u32_u24 v11, 1040, v11
  v_lshl_add_u32 v11, v7, 4, v11
  s_lshl_b32 s64, s6, 8
  v_add_u32 v11, s64, v11
  v_add_u32 v11, {L_YIMG1}, v11
  s_lshl_b32 s64, s6, 9
  v_lshl_add_u32 v12, v6, 4, s64
  v_add_u32 v12, {L_FRED}, v12
  v_and_b32 v13, 1, v1
  v_lshlrev_b32 v13, 8, v13
  v_bfe_u32 v14, v1, 1, 3
  v_lshl_add_u32 v13, v14, 4, v13
  v_lshrrev_b32 v14, 5, v1
  v_lshl_add_u32 v13, v14, 7, v13
  v_bfe_u32 v14, v1, 4, 1
  v_lshl_add_u32 v13, v14, 2, v13
  v_add_u32 v13, {L_FRED}, v13
  v_lshlrev_b32 v56, 3, v14
  s_lshl_b32 s64, s6, 7
  v_lshlrev_b32 v57, 6, v14
  v_lshl_add_u32 v57, v6, 1, v57
  v_add_u32 v57, s64, v57
  v_and_b32 v58, 1, v6
  v_lshlrev_b32 v58, 6, v58
  v_lshl_add_u32 v58, v7, 4, v58
  v_add_u32 v58, s64, v58
  v_lshl_add_u32 v5, v6, 2, v7
  v_mul_u32_u24 v5, {6*2048}, v5
  s_mul_i32 s95, s6, {48*2048}
  s_lshl_b32 s64, s46, 4
  s_add_u32 s95, s95, s64
  s_add_u32 s95, s95, {WS_R2}
  s_waitcnt vmcnt(8)''')
    for s in range(4):
        perm2(64 + 8 * s, 96 + 8 * s)
    a('  s_waitcnt vmcnt(0)')
    perm8(128, 160)
    prep_granule_tags(GLB)
    stamp(6)
    for ps in range(2):
        wait_cnt(C_Y1 if ps == 0 else C_Y2, 4, sleep=(2 if ps == 0 else 0))
        if ps == 1:
            stamp(7)
        for s in range(4):
            a(f'  ds_read_b128 v[{16+4*s}:{19+4*s}], v11 offset:{ps*4160 + 64*s}')
        for s in range(4):
            a(f'  s_waitcnt lgkmcnt({3-s})')
            mfma(32, 16 + 4 * s, 96 + 8 * s, s == 0)
            mfma(36, 16 + 4 * s, 100 + 8 * s, s == 0)
        a(f'''
  s_mov_b64 exec, 0xffff
  ds_write_b128 v12, v[32:35] offset:{ps*2048}
  ds_write_b128 v12, v[36:39] offset:{ps*2048 + 256}
  s_mov_b64 exec, -1''')
        signal(C_F1 if ps == 0 else C_F2)
        wait_cnt(C_F1 if ps == 0 else C_F2, 4 if ps == 0 else 8)
        for uu in range(4):
            o = (ps * 2048 + uu * 512) // 4
            if o + 2 > 255:
                a(f'  ds_read_b32 v{16+2*uu}, v13 offset:{o*4}\n  ds_read_b32 v{17+2*uu}, v13 offset:{o*4+8}')
            else:
                a(f'  ds_read2_b32 v[{16+2*uu}:{17+2*uu}], v13 offset0:{o} offset1:{o+2}')
        if ps == 1:
            for uu in range(4):
                a(f'  ds_read_b64 v[{24+2*uu}:{25+2*uu}], v56 offset:{L_YST + 16*uu}')
        a('''
  s_waitcnt lgkmcnt(0)
  v_pk_add_f32 v[16:17], v[16:17], v[18:19]
  v_pk_add_f32 v[20:21], v[20:21], v[22:23]''')
        if ps == 0:
            a('  v_pk_add_f32 v[60:61], v[16:17], v[20:21]      ; U1, U2')
    a(f'''
  v_pk_add_f32 v[16:17], v[16:17], v[20:21]
  v_pk_add_f32 v[24:25], v[24:25], v[26:27]
  v_pk_add_f32 v[28:29], v[28:29], v[30:31]
  v_pk_add_f32 v[24:25], v[24:25], v[28:29]
  v_add_f32 v16, v16, v17             ; Y
  v_mul_f32 v24, {f2u(1.0/512)}, v24  ; mean
  v_mov_b32 v26, {f2u(1e-5)}
  v_fmac_f32 v26, {f2u(1.0/512)}, v25
  v_fma_f32 v26, -v24, v24, v26
  v_max_f32 v26, {f2u(1e-5)}, v26
  v_rsq_f32 v26, v26
  v_fma_f32 v16, -v24, v60, v16
  v_fma_f32 v16, v16, v26, v61
  v_mov_b32 v17, v16
  v_permlane32_swap_b32 v16, v17
  v_mul_f32 v18, v16, v16
  v_mov_b32 v19, {f2u(-2*0.7978845608028654*LOG2E)}
  v_fmac_f32 v19, {f2u(-2*0.7978845608028654*0.044715*LOG2E)}, v18
  v_mul_f32 v19, v19, v16
  v_exp_f32 v19, v19
  v_add_f32 v19, 1.0, v19
  v_rcp_f32 v19, v19
  v_mul_f32 v16, v16, v17
  v_mul_f32 v16, v16, v19             ; hh
  v_cvt_pk_bf16_f32 v17, v16, v16
  v_lshlrev_b32 v18, 16, v17
  v_sub_f32 v18, v16, v18
  v_cvt_pk_bf16_f32 v18, v18, v18
  ds_write_b16 v57, v17 offset:{L_HHP}
  ds_write_b16 v57, v18 offset:{L_HHP + 32}
  s_waitcnt lgkmcnt(0)
  ds_read_b128 v[16:19], v58 offset:{L_HHP}
  s_waitcnt lgkmcnt(0)''')
    for i8 in range(8):
        mfma(192 + 4 * i8, 160 + 4 * i8, 16, True)
    publish_rs(192, GLB, 95, 2048)
    stamp(8)
    a('L_done:')
    if DBG:
        stamp(15)
        a(f'''
  s_lshl_b32 s64, s2, 3
  s_add_u32 s64, s64, s3
  s_lshl_b32 s64, s64, 6
  s_add_u32 s64, s64, {WS_DBG}
  v_lshlrev_b32 v4, 2, v1
  s_mov_b64 exec, 0xffff
  buffer_store_dword v15, v4, s[8:11], s64 offen''')
    a('''
L_exit:
  s_endpgm''')

    body = a.finish()
    hdr = open('adaLN_cond__compressed_kv_cla__glu_gated_geglu__decode.s.ref').read().split('\n')
    comments = [l for l in hdr if l.startswith(';') and '@launch' not in l and 'Override' not in l and 'grid=ceil' not in l]
    out = '\n'.join(comments) + f'''
; @launch grid=(256,1,1) block=(512,1,1) lds={LDS_BYTES}
.amdgcn_target "amdgcn-amd-amdhsa--gfx950"
.text
.globl {NAME}
.p2align 8
.type {NAME},@function
{NAME}:
{body}.section .rodata,"a"
.p2align 6
.amdhsa_kernel {NAME}
  .amdhsa_next_free_vgpr 256
  .amdhsa_next_free_sgpr 100
  .amdhsa_accum_offset 256
  .amdhsa_group_segment_fixed_size 0
  .amdhsa_kernarg_size 120
  .amdhsa_user_sgpr_count 2
  .amdhsa_user_sgpr_kernarg_segment_ptr 1
  .amdhsa_system_sgpr_workgroup_id_x 1
.end_amdhsa_kernel
'''
    return out


if __name__ == '__main__':
    cfg = {}
    outp = sys.argv[1]
    for kv in sys.argv[2:]:
        k, v = kv.split('=')
        cfg[k] = int(v)
    open(outp, 'w').write(gen(cfg))
```

```python
import sys
from asmlib import Asm

NAME = 'adaLN_cond__compressed_kv_cla__glu_gated_geglu__decode_kernel'

WS_H = 0
WS_MOD = 4096
WS_AG = WS_MOD + 16384
WS_QABS = 32768
WS_R1 = WS_QABS + 131072
WS_R2 = WS_R1 + 192 * 4096
WS_P3 = 2 << 20
WS_DBG = 12 << 20
WS_BYTES = 16 << 20

ROWS = 1056
L_QIMG = 0
L_PIMG = L_QIMG + 16384
L_SMAX = L_PIMG + 4096
L_SSUM = L_SMAX + 256
L_CNT = L_SSUM + 256
L_HIMG = L_CNT + 256
L_QRED = L_HIMG + 2048
L_CKV = L_QRED + 4096
LDS_BYTES = L_CKV + 128 * ROWS
assert LDS_BYTES <= 163840
L_SCP = L_QIMG
L_S0RED = L_QIMG + 2048
L_CSCR = L_CKV
L_WSCR = L_CSCR + 18432
L_XCH = L_WSCR + 512
L_XST = L_XCH + 1024
L_CPRIV = L_XST + 64
L_PCTX = L_CPRIV + 1024
L_YIMG1 = L_PCTX + 512
L_YIMG2 = L_YIMG1 + 4160
L_YST = L_YIMG2 + 4160
L_FRED = L_YST + 64
L_HHP = L_FRED + 4096
assert L_HHP + 512 < 65536
C_S0, C_A1, C_A2, C_BQ, C_BM, C_BP, C_S3D, C_A3, C_A4, C_Y1, C_Y2, C_F1, C_F2 = [4 * i for i in range(13)]

CSNAMES = []
TAG = 0x5AC3A7E1
SCALE = 0.08838834764831845 * 1.4426950408889634
LOG2E = 1.4426950408889634


def f2u(x):
    import struct
    return struct.unpack('<I', struct.pack('<f', x))[0]


def gen(cfg):
    a = Asm()
    DBG = cfg.get('dbg', False)
    NT_CKV = ' nt' if cfg.get('nt_ckv', True) else ''
    NT_W = ' nt' if cfg.get('nt_w', False) else ''
    NT_F = ' nt' if cfg.get('nt_f', False) else ''

    def srd(base, ptr, nbytes):
        a(f'''
  s_mov_b32 s{base}, s{ptr}
  s_mov_b32 s{base+1}, s{ptr+1}
  s_mov_b32 s{base+2}, {nbytes}
  s_mov_b32 s{base+3}, 0x00020000''')

    def stamp(k):
        if not DBG:
            return
        a(f'''
  s_memrealtime s[98:99]
  s_waitcnt lgkmcnt(0)
  v_writelane_b32 v15, s98, {k}''')

    cst = {'n': 16}

    def cs(name):
        if not cfg.get('cyc', 0):
            return
        k = cst['n']
        cst['n'] += 1
        CSNAMES.append((k, name))
        a(f'''
  s_memtime s[98:99]
  s_waitcnt lgkmcnt(0)
  v_writelane_b32 v15, s98, {k}''')

    def tmo(lbl_retry):
        a(f'''
  s_sub_u32 s7, s7, 1
  s_cbranch_scc0 {lbl_retry}
  s_branch L_exit''')

    def signal(cnt):
        a(f'''
  s_waitcnt lgkmcnt(0)
  s_mov_b64 exec, 1
  ds_add_u32 v2, v3 offset:{L_CNT + cnt}
  s_mov_b64 exec, -1''')

    def wait_cnt(cnt, target, sleep=0):
        l = a.label('wc')
        d = a.label('wcd')
        a(f'''
{l}:
  ds_read_b32 v4, v2 offset:{L_CNT + cnt}
  s_waitcnt lgkmcnt(0)
  v_readfirstlane_b32 s68, v4
  s_cmp_ge_u32 s68, {target}
  s_cbranch_scc1 {d}''')
        if sleep:
            a(f'  s_sleep {sleep}')
        tmo(l)
        a(f'{d}:')

    def tbar(cnt):
        signal(cnt)
        wait_cnt(cnt, 4)

    def gpoll(loads, tagcheck=None, init_masks=None, sentinel=True):
        n = len(loads)
        for i in range(n):
            m = (init_masks or {}).get(i, None)
            if m is None:
                a(f'  s_mov_b64 s[{70+2*i}:{71+2*i}], -1')
            else:
                a(f'  s_mov_b32 s{70+2*i}, {m & 0xffffffff}\n  s_mov_b32 s{71+2*i}, {m >> 32}')
        if sentinel and n > 1:
            l = a.label('sp')
            d = a.label('spd')
            a(f'{l}:')
            a('  s_mov_b64 exec, s[70:71]')
            a(loads[0][0])
            a(f'''
  s_waitcnt vmcnt(0)
  v_cmp_eq_u32 vcc, s88, v{loads[0][1]}
  s_cbranch_vccnz {d}
  s_sleep 1''')
            tmo(l)
            a(f'{d}:')
        l = a.label('gp')
        d = a.label('gpd')
        a(f'{l}:')
        for i, (txt, tr) in enumerate(loads):
            sk = a.label('gs')
            a(f'  s_mov_b64 exec, s[{70+2*i}:{71+2*i}]\n  s_cbranch_execz {sk}')
            a(txt)
            a(f'{sk}:')
        a('  s_waitcnt vmcnt(0)')
        for i, (txt, tr) in enumerate(loads):
            a(f'  s_mov_b64 exec, s[{70+2*i}:{71+2*i}]')
            if tagcheck:
                tagcheck(i, tr)
            else:
                a(f'  v_cmp_ne_u32_e64 s[{70+2*i}:{71+2*i}], s88, v{tr}')
        a('  s_mov_b64 exec, -1')
        a('  s_mov_b64 s[68:69], s[70:71]')
        for i in range(1, n):
            a(f'  s_or_b64 s[68:69], s[68:69], s[{70+2*i}:{71+2*i}]')
        a(f'''
  s_cmp_eq_u64 s[68:69], 0
  s_cbranch_scc1 {d}''')
        tmo(l)
        a(f'{d}:')

    def xred(v, t, op, steps):
        for st in steps:
            if st[0] == 'r':
                a(f'  {op}_dpp v{v}, v{v}, v{v} row_ror:{st[1:]} row_mask:0xf bank_mask:0xf')
            else:
                a(f'''
  v_mov_b32 v{t}, v{v}
  v_permlane{st[1:]}_swap_b32 v{v}, v{t}
  {op} v{v}, v{v}, v{t}''')

    def perm8(src, dst):
        for c2 in range(4):
            for q in range(4):
                lo = src + 8 * q + c2
                hi = src + 8 * q + 4 + c2
                a(f'  v_perm_b32 v{dst + 8*c2 + q}, v{hi}, v{lo}, s86')
                a(f'  v_perm_b32 v{dst + 8*c2 + 4 + q}, v{hi}, v{lo}, s87')

    def perm2(src, dst):
        for q in range(4):
            a(f'  v_perm_b32 v{dst + q}, v{src + 2*q + 1}, v{src + 2*q}, s86')
            a(f'  v_perm_b32 v{dst + 4 + q}, v{src + 2*q + 1}, v{src + 2*q}, s87')

    def mfma(d, A, B, first):
        c = '0' if first else f'v[{d}:{d+3}]'
        a(f'  v_mfma_f32_16x16x32_bf16 v[{d}:{d+3}], v[{A}:{A+3}], v[{B}:{B+3}], {c}')

    def publish_rs(dacc, gl, soff_base_s, stride_i):
        for r in range(4):
            for h2 in range(4):
                idx = 4 * r + h2
                dst = gl[idx // 3] + (idx % 3)
                a(f'  v_cvt_pk_bf16_f32 v{dst}, v{dacc + 4*(2*h2) + r}, v{dacc + 4*(2*h2+1) + r}')
        a('  s_mov_b32 exec_lo, 0x00030003\n  s_mov_b32 exec_hi, 0x00030003')
        for i in range(6):
            a(f'  buffer_store_dwordx4 v[{gl[i]}:{gl[i]+3}], v5, s[8:11], s{soff_base_s} offen sc1')
            if i < 5:
                a(f'  s_add_u32 s{soff_base_s}, s{soff_base_s}, {stride_i}')
        a('  s_mov_b64 exec, -1')

    def prep_granule_tags(gl):
        for i in range(6):
            a(f'  v_mov_b32 v{gl[i]+3}, s88')
        a(f'  v_mov_b32 v{gl[5]+1}, 0\n  v_mov_b32 v{gl[5]+2}, 0')

    GLA = [224, 228, 232, 236, 184, 188]
    GLB = [224, 228, 232, 236, 240, 244]

    a(f'''
  s_cmp_ge_u32 s2, 256
  s_cbranch_scc1 L_exit
  s_load_dwordx16 s[16:31], s[0:1], 0
  s_load_dwordx8 s[32:39], s[0:1], 64
  s_load_dwordx4 s[40:43], s[0:1], 96
  s_load_dwordx2 s[44:45], s[0:1], 112
  v_and_b32 v1, 63, v0
  v_lshrrev_b32 v4, 6, v0
  v_mov_b32 v2, 0
  v_mov_b32 v3, 1
  v_mov_b32 v15, 0
  v_readfirstlane_b32 s3, v4
  s_and_b32 s4, s2, 7
  s_lshr_b32 s5, s2, 3
  s_and_b32 s6, s3, 3
  s_mov_b32 s7, 3000000
  s_mov_b32 s86, 0x05040100
  s_mov_b32 s87, 0x07060302
  s_mov_b32 s88, {TAG}
  v_lshlrev_b32 v4, 2, v1
  ds_write_b32 v4, v2 offset:{L_CNT}
  v_and_b32 v6, 15, v1
  v_lshrrev_b32 v7, 4, v1
  s_waitcnt lgkmcnt(0)''')
    srd(8, 44, WS_BYTES)
    stamp(0)
    if DBG:
        a('''
  s_memtime s[98:99]
  s_waitcnt lgkmcnt(0)
  v_writelane_b32 v15, s98, 13''')
    a('''
  s_cmp_ge_u32 s3, 4
  s_cbranch_scc1 L_B''')

    a('''
  s_and_b32 s46, s5, 3
  s_lshl_b32 s46, s46, 3
  s_add_u32 s46, s46, s4
  s_lshr_b32 s47, s5, 2''')
    srd(12, 20, 4 << 20)
    srd(48, 22, 4 << 20)
    srd(52, 42, 256)
    a(f'''
  v_lshlrev_b32 v8, 16, v7
  v_lshl_add_u32 v8, v6, 4, v8
  v_lshlrev_b32 v9, 13, v6
  v_lshl_add_u32 v9, v7, 4, v9
  s_lshl_b32 s64, s6, 20              ; 128v*8192
  s_lshl_b32 s65, s46, 8
  s_add_u32 s64, s64, s65
  v_lshlrev_b32 v10, 4, v0
  v_mov_b32 v240, 0
  v_mov_b32 v241, 0
  v_mov_b32 v242, 0
  v_mov_b32 v243, 0
  s_barrier''')
    WQB = [64, 96, 128, 160]
    for s in range(4):
        for jj in range(8):
            a(f'  buffer_load_dwordx4 v[{WQB[s]+4*jj}:{WQB[s]+4*jj+3}], v8, s[12:15], s64 offen{NT_W}')
            a('  s_add_u32 s64, s64, %d' % (8192 if jj < 7 else 8192 * 25))
    a('''
  s_lshl_b32 s64, s47, 6
  s_lshl_b32 s66, s6, 4
  s_add_u32 s64, s64, s66
  s_lshl_b32 s64, s64, 13
  s_add_u32 s64, s64, s65''')
    for s in range(4):
        a(f'  buffer_load_dwordx4 v[{224+4*s}:{227+4*s}], v9, s[48:51], s64 offen offset:{64*s}{NT_W}')
    a(f'''
  s_lshl_b32 s64, s46, 3
  s_add_u32 s64, s64, s47
  s_mul_i32 s64, s64, 24576
  s_add_u32 s89, s64, {WS_P3}
  s_mov_b32 s64, s89''')
    for i in range(6):
        a('  buffer_store_dwordx4 v[240:243], v10, s[8:11], s64 offen sc1')
        if i < 5:
            a('  s_add_u32 s64, s64, 4096')
    a(f'''
  s_mul_i32 s64, s2, 171
  s_lshr_b32 s64, s64, 10
  s_mul_i32 s65, s64, 6
  s_sub_u32 s65, s2, s65              ; i
  s_and_b32 s66, s64, 3               ; g'
  s_lshr_b32 s67, s64, 2
  s_and_b32 s92, s67, 1               ; b
  s_lshr_b32 s67, s67, 1              ; w
  s_lshl_b32 s90, s67, 7
  s_lshl_b32 s66, s66, 5
  s_add_u32 s90, s90, s66
  s_mul_i32 s66, s65, 6
  s_add_u32 s90, s90, s66             ; col0
  s_cmp_eq_u32 s65, 5
  s_cselect_b32 s91, 2, 6
  s_cmp_ge_u32 s2, 192
  s_cbranch_scc1 L_A_noclr
  s_lshl_b32 s64, s2, 12
  s_add_u32 s64, s64, {WS_R1}
  buffer_store_dwordx4 v[240:243], v10, s[8:11], s64 offen sc1
  s_lshl_b32 s64, s2, 11
  s_add_u32 s64, s64, {WS_R2}
  v_lshlrev_b32 v11, 3, v0
  buffer_store_dwordx2 v[240:241], v11, s[8:11], s64 offen sc1
  s_lshl_b32 s64, s92, 9
  s_add_u32 s64, s64, s90
  s_lshl_b32 s64, s64, 3
  s_add_u32 s64, s64, {WS_AG}
  v_cmp_gt_u32 vcc, s91, v0
  s_and_saveexec_b64 s[66:67], vcc
  s_cbranch_execz L_A_noag
  buffer_store_dwordx2 v[240:241], v11, s[8:11], s64 offen sc1
L_A_noag:
  s_mov_b64 exec, -1
L_A_noclr:''')
    assert all((w * 171) >> 10 == w // 6 for w in range(256))
    stamp(1)
    WQF = [192, 64, 96, 128]
    for s in range(4):
        a(f'  s_waitcnt vmcnt({(3-s)*8 + 10})')
        perm8(WQB[s], WQF[s])
    stamp(2)
    a('''
  v_and_b32 v11, 127, v0
  v_lshrrev_b32 v11, 2, v11
  v_lshlrev_b32 v11, 2, v11''')

    def hcheck(i, tr):
        a('''
  v_not_b32 v21, v20
  v_cmp_ne_u32_e64 s[70:71], v20, v18
  v_cmp_ne_u32_e64 s[66:67], v21, v19
  s_or_b64 s[70:71], s[70:71], s[66:67]
  v_cmp_eq_u32_e64 s[66:67], 0, v20
  s_or_b64 s[70:71], s[70:71], s[66:67]''')
    gpoll([(f'  buffer_load_dwordx4 v[16:19], v10, s[8:11], 0 offen sc1\n  buffer_load_dword v20, v11, s[52:55], 0 offen offset:128 sc1', 18)],
          tagcheck=hcheck, sentinel=False)
    a(f'''
  v_lshlrev_b32 v11, 3, v0
  ds_write_b64 v11, v[16:17] offset:{L_HIMG}''')
    stamp(3)
    cs('A_h')
    tbar(C_A1)
    cs('A_bar1')
    a(f'''
  v_and_b32 v11, 1, v6
  v_lshlrev_b32 v11, 10, v11
  v_lshl_add_u32 v11, v7, 4, v11
  s_lshl_b32 s64, s6, 8
  v_add_u32 v11, s64, v11''')
    for s in range(4):
        a(f'  ds_read_b128 v[{48+4*s}:{51+4*s}], v11 offset:{L_HIMG + 64*s}')
    for s in range(4):
        a(f'  s_waitcnt lgkmcnt({3-s})')
        for i8 in range(8):
            mfma(16 + 4 * i8, 48 + 4 * s, WQF[s] + 4 * i8, s == 0)
    a(f'''
  v_lshlrev_b32 v11, 5, v6
  s_lshl_b32 s64, s6, 10
  v_add_u32 v11, s64, v11
  s_mov_b64 exec, 0xffff''')
    for b in range(2):
        for h2 in range(4):
            off = (L_QRED + b * 512 + h2 * 8) // 4
            if b == 0 and h2 == 0:
                a(f'  v_add_u32 v11, {L_QRED}, v11')
            o0 = (b * 512 + h2 * 8) // 4
            a(f'  ds_write2_b32 v11, v{16 + 8*h2 + b}, v{16 + 8*h2 + 4 + b} offset0:{o0} offset1:{o0+1}')
    a('  s_mov_b64 exec, -1')
    cs('A_s1')
    tbar(C_A2)
    cs('A_bar2')
    a(f'''
  v_lshlrev_b32 v11, 4, v1
  ds_read_b128 v[16:19], v11 offset:{L_QRED}
  ds_read_b128 v[20:23], v11 offset:{L_QRED + 1024}
  ds_read_b128 v[24:27], v11 offset:{L_QRED + 2048}
  ds_read_b128 v[28:31], v11 offset:{L_QRED + 3072}
  v_lshlrev_b32 v11, 3, v0            ; qpriv: v*512 + l*8
  v_and_b32 v12, 1, v6
  v_lshlrev_b32 v12, 8, v12
  v_lshl_add_u32 v12, v7, 4, v12
  s_lshl_b32 s64, s6, 9
  v_add_u32 v12, s64, v12
  s_waitcnt lgkmcnt(2)
  v_pk_add_f32 v[16:17], v[16:17], v[20:21]
  v_pk_add_f32 v[18:19], v[18:19], v[22:23]
  s_waitcnt lgkmcnt(0)
  v_pk_add_f32 v[24:25], v[24:25], v[28:29]
  v_pk_add_f32 v[26:27], v[26:27], v[30:31]
  v_pk_add_f32 v[16:17], v[16:17], v[24:25]
  v_pk_add_f32 v[18:19], v[18:19], v[26:27]
  v_cvt_pk_bf16_f32 v16, v16, v17
  v_cvt_pk_bf16_f32 v17, v18, v19
  ds_write_b64 v11, v[16:17] offset:{L_HIMG}
  s_waitcnt lgkmcnt(0)''')
    for s in range(4):
        a(f'  ds_read_b128 v[{48+4*s}:{51+4*s}], v12 offset:{L_HIMG + 64*s}')
    a(f'''
  v_lshlrev_b32 v5, 16, v6            ; b*65536 (lanes n<2)
  v_lshrrev_b32 v11, 1, v7
  v_lshl_add_u32 v5, v11, 9, v5
  v_and_b32 v11, 1, v7
  v_lshl_add_u32 v5, v11, 4, v5
  s_lshr_b32 s64, s46, 4
  s_lshl_b32 s64, s64, 15
  s_lshl_b32 s65, s47, 2
  s_add_u32 s65, s65, s6
  s_lshl_b32 s65, s65, 10             ; (8j+2v)*512
  s_add_u32 s64, s64, s65
  s_and_b32 s65, s46, 15
  s_lshl_b32 s65, s65, 5
  s_add_u32 s64, s64, s65
  s_add_u32 s64, s64, {WS_QABS}
  v_mov_b32 v22, s88
  v_mov_b32 v23, s88''')
    for s in range(4):
        a(f'  s_waitcnt lgkmcnt({3-s})')
        mfma(16, 224 + 4 * s, 48 + 4 * s, s == 0)
    a('''
  v_cvt_pk_bf16_f32 v20, v16, v17
  v_cvt_pk_bf16_f32 v21, v18, v19
  s_mov_b32 exec_lo, 0x00030003
  s_mov_b32 exec_hi, 0x00030003
  buffer_store_dwordx4 v[20:23], v5, s[8:11], s64 offen sc1
  s_mov_b64 exec, -1''')
    cs('A_s2')
    stamp(4)
    srd(12, 26, 4 << 20)
    srd(48, 24, 4 << 20)
    a(f'''
  v_lshlrev_b32 v8, 13, v7
  v_lshl_add_u32 v8, v6, 4, v8
  v_and_b32 v9, 1, v7
  v_lshlrev_b32 v9, 5, v9
  v_lshrrev_b32 v11, 1, v7
  v_lshl_add_u32 v9, v11, 2, v9
  v_lshlrev_b32 v9, 13, v9
  v_lshl_add_u32 v9, v6, 2, v9
  s_lshl_b32 s64, s47, 19             ; 64j*8192
  s_lshl_b32 s65, s46, 8
  s_add_u32 s64, s64, s65
  s_lshl_b32 s65, s6, 6
  s_add_u32 s64, s64, s65''')
    for ks in range(2):
        for jj in range(8):
            ro = 16 * (jj >> 2) + (jj & 3) + 8 * ks
            a(f'  s_add_u32 s65, s64, {ro * 8192}')
            a(f'  buffer_load_dword v{224 + 8*ks + jj}, v9, s[48:51], s65 offen{NT_W}')
    a('''
  s_lshl_b32 s64, s46, 17
  s_lshl_b32 s65, s6, 8
  s_add_u32 s64, s64, s65''')
    for s in range(4):
        for jj in range(8):
            a(f'  buffer_load_dwordx4 v[{WQB[s]+4*jj}:{WQB[s]+4*jj+3}], v8, s[12:15], s64 offen offset:{(jj&3)*1024}{NT_W}')
            if jj == 3:
                a('  s_add_u32 s64, s64, 4096')
            if jj == 7:
                a('  s_add_u32 s64, s64, %d' % (28 * 1024))
    a('  s_waitcnt vmcnt(32)')
    perm2(224, 240)
    perm2(232, 248)
    for s in range(4):
        a(f'  s_waitcnt vmcnt({(3-s)*8})')
        perm8(WQB[s], WQF[s])
    stamp(5)
    srd(48, 16, 2048)
    a(f'''
  s_cmp_lg_u32 s6, 0
  s_cbranch_scc1 L_A_nors0
  s_cmp_ge_u32 s2, 192
  s_cbranch_scc1 L_A_nors0
  v_min_u32 v11, 5, v6
  v_add_u32 v11, s90, v11             ; col
  v_min_u32 v11, 511, v11
  v_lshrrev_b32 v12, 2, v11
  v_lshlrev_b32 v12, 4, v12
  s_lshl_b32 s64, s92, 13
  s_add_u32 s64, s64, {WS_MOD}
  s_add_u32 s65, s64, {384*16}
  s_lshl_b32 s66, s92, 10
  v_lshlrev_b32 v13, 1, v11
  buffer_load_ushort v160, v13, s[48:51], s66 offen''')
    gpoll([('  buffer_load_dwordx4 v[16:19], v12, s[8:11], s64 offen sc1', 18),
           ('  buffer_load_dwordx4 v[20:23], v12, s[8:11], s65 offen sc1', 22)], sentinel=False)
    a('''
  v_and_b32 v13, 2, v11
  v_cmp_ne_u32 vcc, 0, v13
  v_cndmask_b32 v16, v16, v17, vcc
  v_cndmask_b32 v20, v20, v21, vcc
  v_and_b32 v13, 1, v11
  v_lshlrev_b32 v13, 4, v13
  v_lshrrev_b32 v16, v13, v16
  v_lshrrev_b32 v20, v13, v20
  v_lshlrev_b32 v161, 16, v16         ; ga
  v_lshlrev_b32 v162, 16, v20         ; gb
  v_lshlrev_b32 v160, 16, v160        ; x
  v_mov_b32 v12, 0x3f80
  v_mov_b32 v13, 0x3f800000''')
    for q in range(4):
        a(f'''
  v_cmp_eq_u32 vcc, {2*q}, v6
  v_cndmask_b32 v{164+q}, 0, v12, vcc
  v_cmp_eq_u32 vcc, {2*q+1}, v6
  v_cndmask_b32 v{164+q}, v{164+q}, v13, vcc''')
    a('L_A_nors0:')
    wait_cnt(C_S3D, 4, sleep=2)
    a(f'''
  s_cmp_lt_u32 s5, 18
  s_cbranch_scc1 L_A_noffn0
  v_lshrrev_b32 v12, 1, v0
  v_lshlrev_b32 v12, 4, v12           ; (2L>>2)*16''')
    gpoll([(f'  s_mov_b32 s66, {WS_MOD + (0*512 + 256)*16}\n  buffer_load_dwordx4 v[16:19], v12, s[8:11], s66 offen sc1', 18),
           (f'  s_mov_b32 s66, {WS_MOD + (1*512 + 256)*16}\n  buffer_load_dwordx4 v[20:23], v12, s[8:11], s66 offen sc1', 22),
           (f'  s_mov_b32 s66, {WS_MOD + (0*512 + 128)*16}\n  buffer_load_dwordx4 v[24:27], v12, s[8:11], s66 offen sc1', 26),
           (f'  s_mov_b32 s66, {WS_MOD + (1*512 + 128)*16}\n  buffer_load_dwordx4 v[28:31], v12, s[8:11], s66 offen sc1', 30)],
          sentinel=False)
    a(f'''
  v_and_b32 v13, 1, v0
  v_cmp_ne_u32 vcc, 0, v13
  v_cndmask_b32 v16, v16, v17, vcc
  v_cndmask_b32 v20, v20, v21, vcc
  v_cndmask_b32 v24, v24, v25, vcc
  v_cndmask_b32 v28, v28, v29, vcc
  v_lshlrev_b32 v168, 16, v16
  v_and_b32 v169, 0xffff0000, v16
  v_lshlrev_b32 v170, 16, v20
  v_and_b32 v171, 0xffff0000, v20
  v_add_f32 v168, 1.0, v168
  v_add_f32 v169, 1.0, v169
  v_add_f32 v170, 1.0, v170
  v_add_f32 v171, 1.0, v171
  v_cvt_pk_bf16_f32 v16, v168, v169
  v_cvt_pk_bf16_f32 v20, v170, v171
  v_lshlrev_b32 v168, 16, v16
  v_and_b32 v169, 0xffff0000, v16
  v_lshlrev_b32 v170, 16, v20
  v_and_b32 v171, 0xffff0000, v20
  v_lshlrev_b32 v13, 2, v0
  ds_write_b32 v13, v16 offset:{L_YIMG1}
  ds_write_b32 v13, v20 offset:{L_YIMG1 + 1040}
  ds_write_b32 v13, v24 offset:{L_YIMG1 + 2080}
  ds_write_b32 v13, v28 offset:{L_YIMG1 + 3120}''')
    signal(C_Y1)
    a('L_A_noffn0:')
    stamp(6)
    a(f'''
  s_lshl_b32 s64, s6, 11
  v_lshlrev_b32 v11, 4, v1
  v_add_u32 v11, s64, v11             ; (v*128+l)*16
  s_add_u32 s93, s89, 8192
  s_add_u32 s94, s89, 16384
  v_lshrrev_b32 v12, 2, v1
  v_mul_u32_u24 v12, 144, v12
  v_and_b32 v13, 3, v1
  v_lshl_add_u32 v12, v13, 5, v12
  s_mul_i32 s64, s6, {32*144}
  v_add_u32 v12, s64, v12
  v_lshrrev_b32 v13, 2, v6
  v_lshl_add_u32 v13, v7, 3, v13
  v_mul_u32_u24 v13, 144, v13
  v_and_b32 v14, 3, v6
  v_lshl_add_u32 v13, v14, 3, v13
  v_add_u32 v13, s64, v13
  v_lshrrev_b32 v14, 2, v1
  v_lshlrev_b32 v14, 1, v14
  s_lshl_b32 s64, s6, 7
  v_add_u32 v14, s64, v14
  v_and_b32 v172, 1, v6
  v_lshlrev_b32 v172, 6, v172
  v_lshl_add_u32 v172, v7, 4, v172
  v_add_u32 v172, s64, v172
  s_lshl_b32 s64, s6, 8
  v_lshl_add_u32 v173, v6, 2, s64
  s_lshl_b32 s65, s6, 3
  v_mov_b32 v174, s65
  v_lshrrev_b32 v175, 5, v1           ; b
  v_and_b32 v176, 31, v1
  v_lshlrev_b32 v176, 3, v176
  v_lshl_add_u32 v176, v175, 9, v176
  v_lshlrev_b32 v175, 4, v175
  v_lshl_add_u32 v177, v1, 2, s64
  v_and_b32 v178, 1, v6
  v_lshlrev_b32 v178, 7, v178
  v_lshl_add_u32 v178, v7, 4, v178
  v_add_u32 v178, s64, v178
  s_lshl_b32 s64, s6, 6
  v_lshl_add_u32 v179, v6, 2, s64
  v_and_b32 v180, 1, v6
  v_lshlrev_b32 v180, 8, v180
  v_lshl_add_u32 v180, v7, 4, v180
  v_lshl_add_u32 v5, v6, 2, v7
  v_mul_u32_u24 v5, {6*4096}, v5
  s_mul_i32 s95, s6, {48*4096}
  s_lshl_b32 s64, s2, 4
  s_add_u32 s95, s95, s64
  s_add_u32 s95, s95, {WS_R1}''')
    prep_granule_tags(GLA)
    sb = {0: 's89', 1: 's93', 2: 's94'}
    loads = []
    for z in range(2):
        for i in range(3):
            r = 16 + 12 * z + 4 * i
            loads.append((f'  buffer_load_dwordx4 v[{r}:{r+3}], v11, s[8:11], {sb[i]} offen offset:{1024*z} sc1', r + 3))
    gpoll(loads)
    stamp(7)
    cs('A_p3')
    a(f'''
  v_mov_b32 v19, v24
  v_mov_b32 v23, v25
  v_mov_b32 v31, v36
  v_mov_b32 v35, v37
  ds_write_b128 v12, v[16:19] offset:{L_CSCR}
  ds_write_b128 v12, v[20:23] offset:{L_CSCR + 16}
  ds_write_b128 v12, v[28:31] offset:{L_CSCR + 16*144}
  ds_write_b128 v12, v[32:35] offset:{L_CSCR + 16*144 + 16}
  v_max_f32 v40, v26, v38''')
    xred(40, 41, 'v_max_f32', ['r4', 'r8', 'p16', 'p32'])
    a(f'''
  v_sub_f32 v26, v26, v40
  v_sub_f32 v38, v38, v40
  v_exp_f32 v26, v26
  v_exp_f32 v38, v38
  v_cvt_pk_bf16_f32 v42, v26, v38
  v_add_f32 v41, v26, v38
  v_lshlrev_b32 v43, 16, v42
  v_and_b32 v44, 0xffff0000, v42
  v_sub_f32 v43, v26, v43
  v_sub_f32 v44, v38, v44
  v_cvt_pk_bf16_f32 v43, v43, v44
  ds_write_b16 v14, v42 offset:{L_WSCR}
  ds_write_b16_d16_hi v14, v42 offset:{L_WSCR + 32}
  ds_write_b16 v14, v43 offset:{L_WSCR + 64}
  ds_write_b16_d16_hi v14, v43 offset:{L_WSCR + 96}
  s_waitcnt lgkmcnt(0)
  ds_read_b128 v[44:47], v172 offset:{L_WSCR}''')
    for nt in range(4):
        a(f'  ds_read_b64_tr_b16 v[{16+4*nt}:{17+4*nt}], v13 offset:{L_CSCR + 32*nt}')
        a(f'  ds_read_b64_tr_b16 v[{18+4*nt}:{19+4*nt}], v13 offset:{L_CSCR + 32*nt + 4*144}')
    xred(41, 42, 'v_add_f32', ['r4', 'r8', 'p16', 'p32'])
    for nt in range(4):
        a(f'  s_waitcnt lgkmcnt({6-2*nt})')
        mfma(48 + 4 * nt, 44, 16 + 4 * nt, True)
    a('  s_mov_b64 exec, 0xffff')
    for nt in range(4):
        a(f'  v_add_f32 v{48+4*nt}, v{48+4*nt}, v{49+4*nt}')
        a(f'  ds_write_b32 v173, v{48+4*nt} offset:{L_XCH + 64*nt}')
    a(f'''
  ds_write_b64 v174, v[40:41] offset:{L_XST}
  s_mov_b64 exec, -1''')
    cs('A_comb')
    tbar(C_A3)
    cs('A_bar3')
    a(f'''
  ds_read_b128 v[16:19], v175 offset:{L_XST}
  ds_read_b64 v[20:21], v176 offset:{L_XCH}
  ds_read_b64 v[22:23], v176 offset:{L_XCH + 256}
  s_waitcnt lgkmcnt(2)
  v_max_f32 v24, v16, v18
  v_sub_f32 v16, v16, v24
  v_sub_f32 v18, v18, v24
  v_exp_f32 v16, v16
  v_exp_f32 v18, v18
  v_mul_f32 v17, v17, v16
  v_fmac_f32 v17, v19, v18
  v_rcp_f32 v17, v17
  v_mul_f32 v16, v16, v17
  v_mul_f32 v18, v18, v17
  s_waitcnt lgkmcnt(0)
  v_mul_f32 v20, v20, v16
  v_mul_f32 v21, v21, v16
  v_fmac_f32 v20, v22, v18
  v_fmac_f32 v21, v23, v18
  v_cvt_pk_bf16_f32 v20, v20, v21
  ds_write_b32 v177, v20 offset:{L_CPRIV}
  s_waitcnt lgkmcnt(0)
  ds_read_b128 v[16:19], v178 offset:{L_CPRIV}
  ds_read_b128 v[20:23], v178 offset:{L_CPRIV + 64}
  s_waitcnt lgkmcnt(1)''')
    mfma(24, 16, 240, True)
    mfma(28, 16, 244, True)
    a('  s_waitcnt lgkmcnt(0)')
    mfma(24, 20, 248, False)
    mfma(28, 20, 252, False)
    a(f'''
  s_mov_b64 exec, 0xffff
  v_cvt_pk_bf16_f32 v24, v24, v28
  v_cvt_pk_bf16_f32 v25, v25, v29
  ds_write_b32 v179, v24 offset:{L_PCTX}
  ds_write_b32 v179, v25 offset:{L_PCTX + 256}
  s_mov_b64 exec, -1''')
    cs('A_st1')
    tbar(C_A4)
    cs('A_bar4')
    for s in range(4):
        a(f'  ds_read_b128 v[{48+4*s}:{51+4*s}], v180 offset:{L_PCTX + 64*s}')
    for s in range(4):
        a(f'  s_waitcnt lgkmcnt({3-s})')
        for i8 in range(8):
            mfma(16 + 4 * i8, WQF[s] + 4 * i8, 48 + 4 * s, s == 0)
    cs('A_st2')
    publish_rs(16, GLA, 95, 4096)
    cs('A_pub')
    stamp(8)
    a(f'''
  s_cmp_lg_u32 s6, 0
  s_cbranch_scc1 L_A_nors1
  s_cmp_ge_u32 s2, 192
  s_cbranch_scc1 L_A_nors1
  v_lshlrev_b32 v11, 4, v1
  s_lshl_b32 s93, s2, 12
  s_add_u32 s93, s93, {WS_R1}
  s_lshl_b32 s94, s92, 9
  s_add_u32 s94, s94, s90
  s_lshl_b32 s94, s94, 3
  s_add_u32 s94, s94, {WS_AG}
  v_lshlrev_b32 v12, 3, v1
  v_mov_b32 v183, s88''')
    gpoll([(f'  buffer_load_dwordx4 v[{16+4*i}:{19+4*i}], v11, s[8:11], s93 offen offset:{1024*i} sc1', 19 + 4 * i) for i in range(4)])
    for i in range(4):
        a(f'  v_mov_b32 v{19+4*i}, 0')
    for i in range(4):
        mfma(32, 16 + 4 * i, 164, i == 0)
    a('''
  v_add_f32 v32, v32, v33
  v_add_f32 v34, v34, v35
  v_add_f32 v32, v32, v34''')
    xred(32, 33, 'v_add_f32', ['p16', 'p32'])
    a('''
  v_fma_f32 v182, v161, v32, v160     ; x1
  v_cmp_gt_u32 vcc, s91, v1
  s_and_saveexec_b64 s[66:67], vcc
  buffer_store_dwordx2 v[182:183], v12, s[8:11], s94 offen sc1
  s_mov_b64 exec, -1
L_A_nors1:''')
    stamp(9)
    a(f'''
  s_cmp_lt_u32 s5, 18
  s_cbranch_scc1 L_A_noffn1
  v_lshlrev_b32 v13, 2, v0
  s_lshl_b32 s93, s6, 4
  v_mov_b32 v14, s93''')

    def agcheck(i, tr):
        a(f'''
  v_cmp_ne_u32_e64 s[{70+2*i}:{71+2*i}], s88, v{tr}
  v_cmp_ne_u32_e64 s[66:67], s88, v{tr-2}
  s_or_b64 s[{70+2*i}:{71+2*i}], s[{70+2*i}:{71+2*i}], s[66:67]''')
    gpoll([(f'  s_mov_b32 s66, {WS_AG}\n  buffer_load_dwordx4 v[16:19], v10, s[8:11], s66 offen sc1', 19),
           (f'  s_mov_b32 s66, {WS_AG + 4096}\n  buffer_load_dwordx4 v[20:23], v10, s[8:11], s66 offen sc1', 23)],
          tagcheck=agcheck, sentinel=False)
    stamp(10)
    a(f'''
  v_mul_f32 v24, v16, v168
  v_mul_f32 v25, v18, v169
  v_mul_f32 v26, v20, v170
  v_mul_f32 v27, v22, v171
  v_cvt_pk_bf16_f32 v28, v24, v25
  v_cvt_pk_bf16_f32 v29, v26, v27
  ds_write_b32 v13, v28 offset:{L_YIMG2}
  ds_write_b32 v13, v29 offset:{L_YIMG2 + 1040}
  v_lshlrev_b32 v30, 16, v28
  v_and_b32 v31, 0xffff0000, v28
  v_lshlrev_b32 v32, 16, v29
  v_and_b32 v33, 0xffff0000, v29
  v_sub_f32 v24, v24, v30
  v_sub_f32 v25, v25, v31
  v_sub_f32 v26, v26, v32
  v_sub_f32 v27, v27, v33
  v_cvt_pk_bf16_f32 v28, v24, v25
  v_cvt_pk_bf16_f32 v29, v26, v27
  ds_write_b32 v13, v28 offset:{L_YIMG2 + 2080}
  ds_write_b32 v13, v29 offset:{L_YIMG2 + 3120}''')
    signal(C_Y2)
    a('''
  v_add_f32 v24, v16, v18
  v_mul_f32 v25, v16, v16
  v_fmac_f32 v25, v18, v18
  v_add_f32 v26, v20, v22
  v_mul_f32 v27, v20, v20
  v_fmac_f32 v27, v22, v22''')
    for st in ['r1', 'r2', 'r4', 'r8']:
        for v in range(24, 28):
            xred(v, 28, 'v_add_f32', [st])
    for st in ['p16', 'p32']:
        for v in range(24, 28):
            xred(v, v + 4, 'v_add_f32', [st])
    a(f'''
  s_mov_b64 exec, 1
  ds_write_b128 v14, v[24:27] offset:{L_YST}
  s_mov_b64 exec, -1''')
    signal(C_F2)
    a('L_A_noffn1:')
    srd(48, 40, 2048)
    a(f'''
  s_cmp_lg_u32 s6, 0
  s_cbranch_scc1 L_done
  s_cmp_ge_u32 s2, 192
  s_cbranch_scc1 L_done
  s_lshl_b32 s93, s2, 11
  s_add_u32 s93, s93, {WS_R2}
  s_lshl_b32 s94, s92, 9
  s_add_u32 s94, s94, s90
  s_lshl_b32 s94, s94, 1
  v_lshlrev_b32 v12, 1, v1
  v_mov_b32 v20, 0
  v_mov_b32 v21, 0
  v_mov_b32 v22, 0''')
    gpoll([(f'  buffer_load_dwordx4 v[{16+4*i}:{19+4*i}], v11, s[8:11], s93 offen offset:{1024*i} sc1', 19 + 4 * i) for i in range(2)],
          init_masks={1: (1 << 48) - 1})
    stamp(11)
    for i in range(2):
        a(f'  v_mov_b32 v{19+4*i}, 0')
    for i in range(2):
        mfma(32, 16 + 4 * i, 164, i == 0)
    a('''
  v_add_f32 v32, v32, v33
  v_add_f32 v34, v34, v35
  v_add_f32 v32, v32, v34''')
    xred(32, 33, 'v_add_f32', ['p16', 'p32'])
    a('''
  v_fma_f32 v32, v162, v32, v182
  v_cvt_pk_bf16_f32 v32, v32, v32
  v_cmp_gt_u32 vcc, s91, v1
  s_and_saveexec_b64 s[66:67], vcc
  buffer_store_short v32, v12, s[48:51], s94 offen
  s_mov_b64 exec, -1
  s_branch L_done''')

    a('L_B:')
    cst['n'] = 40
    a('''
  s_and_b32 s46, s5, 1
  s_lshr_b32 s64, s5, 2
  s_lshl_b32 s64, s64, 1
  s_add_u32 s46, s46, s64
  s_lshl_b32 s47, s46, 3
  s_add_u32 s47, s47, s4
  s_lshr_b32 s89, s5, 1
  s_and_b32 s89, s89, 1
  s_xor_b32 s89, s89, 1
  v_and_b32 v10, 255, v0
  v_mov_b32 v60, 0
  s_mov_b32 s90, 0
  s_cmp_eq_u32 s89, 0
  s_cbranch_scc1 L_B_nos0a
  s_cmp_ge_u32 s46, 12
  s_cbranch_scc1 L_B_nos0a''')
    srd(12, 38, 3 << 20)
    srd(48, 36, 2048)
    srd(52, 16, 2048)
    srd(56, 42, 256)
    a(f'''
  s_cmp_ge_u32 s46, 4
  s_cbranch_scc1 L_B_noncrit
  s_mov_b32 s90, 1
  s_lshl_b32 s91, s4, 2
  s_add_u32 s91, s91, s46             ; t
  s_lshl_b32 s92, s91, 4              ; o1
  s_add_u32 s93, s92, 512             ; o2
  ; epoch
  s_memrealtime s[66:67]
  v_mov_b32 v16, 0
  v_mov_b32 v17, 0
  v_mov_b32 v18, 0
  v_mov_b32 v19, 0
  v_lshlrev_b32 v11, 4, v10
  s_lshl_b32 s64, s91, 12
  s_add_u32 s64, s64, {WS_QABS}
  buffer_store_dwordx4 v[16:19], v11, s[8:11], s64 offen sc1
  s_cmp_ge_u32 s91, 4
  s_cbranch_scc1 L_B_nomclr
  s_lshl_b32 s64, s91, 12
  s_add_u32 s64, s64, {WS_MOD}
  buffer_store_dwordx4 v[16:19], v11, s[8:11], s64 offen sc1
L_B_nomclr:
  s_waitcnt lgkmcnt(0)
  s_or_b32 s94, s66, 1
  s_cmp_lg_u32 s6, 0
  s_cbranch_scc1 L_B_s0ld
  s_lshl_b32 s64, s91, 2
  v_mov_b32 v12, s64
  v_mov_b32 v13, s94
  s_mov_b64 exec, 1
  buffer_store_dword v13, v12, s[56:59], 0 offen offset:128 sc1
  s_mov_b64 exec, -1
  s_branch L_B_s0ld
L_B_noncrit:
  s_mov_b32 s90, 2
  s_lshl_b32 s91, s4, 3
  s_add_u32 s91, s91, s46
  s_sub_u32 s91, s91, 4               ; t'
  s_lshl_b32 s92, s91, 5
  s_add_u32 s92, s92, 1024
  s_add_u32 s93, s92, 16
L_B_s0ld:
  v_lshrrev_b32 v11, 5, v1            ; b
  v_and_b32 v12, 31, v1
  v_lshlrev_b32 v13, 10, v11
  v_lshl_add_u32 v14, v12, 3, v13
  s_lshl_b32 s64, s6, 8
  buffer_load_dwordx2 v[16:17], v14, s[48:51], s64 offen
  v_lshl_add_u32 v14, v12, 5, v13
  buffer_load_dwordx4 v[20:23], v14, s[52:55], 0 offen
  buffer_load_dwordx4 v[24:27], v14, s[52:55], 0 offen offset:16
  s_and_b32 s64, s92, 511
  s_lshl_b32 s64, s64, 1
  v_lshl_add_u32 v14, v6, 1, v13
  buffer_load_ushort v28, v14, s[52:55], s64 offen
  v_mul_u32_u24 v8, {8*6144}, v7
  v_and_b32 v9, 7, v1
  v_lshl_add_u32 v8, v9, 2, v8
  v_and_b32 v9, 8, v1
  v_cmp_ne_u32 vcc, 0, v9
  v_mov_b32 v9, s92
  v_mov_b32 v14, s93
  v_cndmask_b32 v9, v9, v14, vcc
  v_lshl_add_u32 v8, v9, 1, v8
  s_mul_i32 s64, s6, {128*6144}''')
    for s in range(4):
        for jj in range(8):
            a(f'  buffer_load_dword v{64+8*s+jj}, v8, s[12:15], s64 offen')
            a('  s_add_u32 s64, s64, %d' % (6144 if jj < 7 else 6144 * 25))
    a('''
L_B_nos0a:
  s_barrier
  s_cmp_eq_u32 s90, 0
  s_cbranch_scc1 L_B_nos0b
  s_waitcnt vmcnt(35)
  v_lshlrev_b32 v30, 16, v16
  v_and_b32 v31, 0xffff0000, v16
  v_lshlrev_b32 v32, 16, v17
  v_and_b32 v33, 0xffff0000, v17''')
    a(f'  s_mov_b32 s64, {f2u(-LOG2E)}')
    for k in range(4):
        a(f'  v_mul_f32 v{34+k}, s64, v{30+k}')
    for k in range(4):
        a(f'  v_exp_f32 v{34+k}, v{34+k}')
    for k in range(4):
        a(f'  v_add_f32 v{34+k}, 1.0, v{34+k}')
    for k in range(4):
        a(f'  v_rcp_f32 v{34+k}, v{34+k}')
    for k in range(4):
        a(f'  v_mul_f32 v{30+k}, v{30+k}, v{34+k}')
    a(f'''
  v_cvt_pk_bf16_f32 v16, v30, v31
  v_cvt_pk_bf16_f32 v17, v32, v33
  v_lshlrev_b32 v14, 3, v10
  ds_write_b64 v14, v[16:17] offset:{L_SCP}
  v_and_b32 v14, 1, v6
  v_lshlrev_b32 v14, 8, v14
  v_lshl_add_u32 v14, v7, 4, v14
  s_lshl_b32 s64, s6, 9
  v_add_u32 v14, s64, v14
  s_waitcnt lgkmcnt(0)''')
    for s in range(4):
        a(f'  ds_read_b128 v[{32+4*s}:{35+4*s}], v14 offset:{L_SCP + 64*s}')
    a('  s_waitcnt vmcnt(32)')
    for k in range(8):
        a(f'  v_lshlrev_b32 v{128+2*k}, 16, v{20+k}\n  v_and_b32 v{129+2*k}, 0xffff0000, v{20+k}')
    a('  v_add_f32 v56, v128, v129')
    for k in range(2, 16):
        a(f'  v_add_f32 v56, v56, v{128+k}')
    xred(56, 57, 'v_add_f32', ['r1', 'r2', 'r4', 'r8', 'p16'])
    a(f'  v_mul_f32 v56, {f2u(1.0/512)}, v56')
    a('  v_mov_b32 v57, 0')
    for k in range(16):
        a(f'  v_sub_f32 v{128+k}, v{128+k}, v56\n  v_fmac_f32 v57, v{128+k}, v{128+k}')
    xred(57, 58, 'v_add_f32', ['r1', 'r2', 'r4', 'r8', 'p16'])
    a(f'''
  v_mov_b32 v58, {f2u(1e-5)}
  v_fmac_f32 v58, {f2u(1.0/512)}, v57
  v_rsq_f32 v57, v58
  v_lshlrev_b32 v28, 16, v28
  v_sub_f32 v28, v28, v56
  v_mul_f32 v28, v28, v57''')
    for s in range(4):
        a(f'  s_waitcnt vmcnt({24-8*s})')
        perm2(64 + 8 * s, 96 + 8 * s)
    a('  s_waitcnt lgkmcnt(0)')
    for s in range(4):
        mfma(48, 32 + 4 * s, 96 + 8 * s, s == 0)
        mfma(52, 32 + 4 * s, 100 + 8 * s, s == 0)
    a(f'''
  s_lshl_b32 s64, s6, 8
  v_lshl_add_u32 v14, v6, 3, s64
  s_mov_b64 exec, 0xffff
  ds_write_b64 v14, v[48:49] offset:{L_S0RED}
  ds_write_b64 v14, v[52:53] offset:{L_S0RED + 128}
  s_mov_b64 exec, -1''')
    signal(C_S0)
    a('''
  s_cmp_lg_u32 s6, 0
  s_cbranch_scc1 L_B_nos0b''')
    a('''
  v_and_b32 v14, 1, v1
  v_lshlrev_b32 v14, 7, v14
  v_bfe_u32 v13, v1, 1, 4             ; mat*8 + n2
  v_lshl_add_u32 v14, v13, 3, v14
  v_lshl_add_u32 v14, v11, 2, v14
  v_xor_b32 v13, 64, v14''')
    wait_cnt(C_S0, 4)
    for uu in range(4):
        a(f'  ds_read_b32 v{32+uu}, v14 offset:{L_S0RED + 256*uu}')
        a(f'  ds_read_b32 v{36+uu}, v13 offset:{L_S0RED + 256*uu}')
    a(f'''
  s_waitcnt lgkmcnt(0)
  v_add_f32 v32, v32, v33
  v_add_f32 v34, v34, v35
  v_add_f32 v36, v36, v37
  v_add_f32 v38, v38, v39
  v_add_f32 v32, v32, v34             ; own
  v_add_f32 v36, v36, v38             ; other
  s_cmp_eq_u32 s90, 2
  s_cbranch_scc1 L_B_s0pack
  v_add_f32 v36, 1.0, v36
  v_fmac_f32 v32, v28, v36
L_B_s0pack:
  v_mov_b32_dpp v33, v32 quad_perm:[1,1,3,3] row_mask:0xf bank_mask:0xf
  v_cvt_pk_bf16_f32 v56, v32, v33
  v_mov_b32_dpp v57, v56 quad_perm:[2,2,2,2] row_mask:0xf bank_mask:0xf
  s_cmp_eq_u32 s90, 2
  s_cbranch_scc1 L_B_s0nc
  v_mov_b32 v58, s94
  v_not_b32 v59, v58
  v_lshlrev_b32 v60, 11, v11
  v_lshl_add_u32 v60, v6, 2, v60      ; (cidx/4)*16 = cidx*4 for cidx%4==0
  s_lshl_b32 s64, s91, 6
  s_mov_b32 exec_lo, 0x00001111
  s_mov_b32 exec_hi, 0x00001111
  buffer_store_dwordx4 v[56:59], v60, s[8:11], s64 offen sc1
  s_mov_b64 exec, -1
  s_branch L_B_nos0b
L_B_s0nc:
  v_mov_b32 v58, s88
  v_mov_b32 v59, s88
  v_lshlrev_b32 v60, 13, v11
  v_lshl_add_u32 v60, v12, 2, v60     ; b*8192 + (lane&31)*4
  s_lshl_b32 s95, s91, 7
  s_add_u32 s95, s95, {WS_MOD}
L_B_nos0b:''')
    stamp(1)
    srd(12, 18, 16 << 20)
    a(f'''
  v_lshlrev_b32 v8, 4, v1
  s_lshl_b32 s64, s47, 17
  s_lshl_b32 s65, s6, 15
  s_add_u32 s64, s64, s65
  s_mul_i32 s65, s6, {32*ROWS}
  s_add_u32 s65, s65, {L_CKV}''')
    for r in range(32):
        a(f'''
  s_mov_b32 m0, s65
  s_add_u32 s65, s65, {ROWS}
  buffer_load_dwordx4 v8, s[12:15], s64 offen{NT_CKV} lds
  s_add_u32 s64, s64, 1024''')
    a(f'''
  v_mul_u32_u24 v9, {ROWS}, v6
  v_lshl_add_u32 v9, v7, 4, v9
  s_mul_i32 s65, s6, {32*ROWS}
  s_add_u32 s65, s65, {L_CKV}
  v_add_u32 v9, s65, v9
  v_lshrrev_b32 v11, 2, v6
  v_lshl_add_u32 v11, v7, 2, v11
  v_mul_u32_u24 v11, {ROWS}, v11
  v_and_b32 v12, 3, v6
  v_lshl_add_u32 v11, v12, 3, v11
  s_lshl_b32 s65, s6, 8
  s_add_u32 s65, s65, {L_CKV}
  v_add_u32 v11, s65, v11
  v_add_u32 v12, {64*ROWS}, v11       ; (ku>=2)
  v_lshlrev_b32 v13, 4, v10           ; L*16
  v_lshlrev_b32 v14, 3, v10           ; L*8
  s_lshr_b32 s64, s47, 6
  s_lshl_b32 s64, s64, 1
  s_add_u32 s64, s64, s89
  s_lshl_b32 s64, s64, 15
  s_add_u32 s91, s64, {WS_QABS}''')
    stamp(2)
    for kt in range(2):
        a(f'  s_waitcnt vmcnt({16-16*kt})')
        for s in range(16):
            r = 64 + 64 * kt + 4 * s
            a(f'  ds_read_b128 v[{r}:{r+3}], v9 offset:{kt*16*ROWS + 64*s}')
    stamp(3)
    wait_cnt(C_A1, 4, sleep=1)
    a('''
  s_cmp_lg_u32 s90, 2
  s_cbranch_scc1 L_B_nomod
  s_cmp_lg_u32 s6, 0
  s_cbranch_scc1 L_B_nomod
  s_mov_b32 exec_lo, 0x11111111
  s_mov_b32 exec_hi, 0x11111111
  buffer_store_dwordx4 v[56:59], v60, s[8:11], s95 offen sc1
  s_mov_b64 exec, -1
L_B_nomod:''')
    a(f'''
  v_mul_u32_u24 v5, 0x30000, v6
  v_lshl_add_u32 v5, v7, 4, v5
  s_mul_i32 s92, s89, {16*196608}
  s_lshl_b32 s64, s47, 6
  s_add_u32 s92, s92, s64
  s_mul_i32 s64, s6, {6*8192}
  s_add_u32 s92, s92, s64
  s_add_u32 s92, s92, {WS_P3}
  v_lshlrev_b32 v58, 4, v6
  s_lshl_b32 s64, s6, 2
  v_add_u32 v59, s64, v58
  s_lshl_b32 s64, s6, 10
  v_add_u32 v60, s64, v8
  s_mov_b32 s93, {f2u(SCALE)}''')
    gpoll([(f'  s_add_u32 s66, s91, {4096*i}\n  buffer_load_dwordx4 v[{16+4*i}:{19+4*i}], v13, s[8:11], s66 offen sc1', 18 + 4 * i) for i in range(8)])
    stamp(4)
    cs('B_q')
    for i in range(8):
        a(f'  ds_write_b64 v14, v[{16+4*i}:{17+4*i}] offset:{L_QIMG + 2048*i}')
    tbar(C_BQ)
    cs('B_barq')
    for s in range(16):
        a(f'  ds_read_b128 v[{192+4*s}:{195+4*s}], v8 offset:{L_QIMG + 1024*s}')
    PVF = {}

    def trr(s_, kt):
        r = 64 + 64 * kt + 4 * s_
        q = 2 * s_ + kt
        t8, ku = q & 7, q >> 3
        PVF[(t8, ku)] = r
        base = 'v11' if ku < 2 else 'v12'
        off = (ku & 1) * 32 * ROWS + 32 * t8
        a(f'  ds_read_b64_tr_b16 v[{r}:{r+1}], {base} offset:{off}')
        a(f'  ds_read_b64_tr_b16 v[{r+2}:{r+3}], {base} offset:{off + 16*ROWS}')
    for s in range(16):
        if s < 8:
            a(f'  s_waitcnt lgkmcnt({15 - s})')
        if s == 8:
            a('  s_waitcnt lgkmcnt(0)')
        for kt in range(2):
            r = 64 + 64 * kt + 4 * s
            mfma(48 + 4 * kt, r, 192 + 4 * s, s == 0)
        if s >= 8:
            for kt in range(2):
                trr(s - 8, kt)
            for kt in range(2):
                trr(s, kt)
    a('''
  v_max3_f32 v56, v48, v49, v50
  v_max3_f32 v56, v56, v51, v52
  v_max3_f32 v56, v56, v53, v54
  v_max_f32 v56, v56, v55''')
    xred(56, 57, 'v_max_f32', ['p16', 'p32'])
    a(f'''
  ds_write_b32 v59, v56 offset:{L_SMAX}''')
    cs('B_qk')
    tbar(C_BM)
    cs('B_barm')
    a(f'''
  ds_read_b128 v[16:19], v58 offset:{L_SMAX}
  s_waitcnt lgkmcnt(0)
  v_max3_f32 v56, v16, v17, v18
  v_max_f32 v56, v56, v19
  v_mul_f32 v56, s93, v56''')
    for k in range(8):
        a(f'  v_fma_f32 v{48+k}, v{48+k}, s93, -v56')
    for k in range(8):
        a(f'  v_exp_f32 v{48+k}, v{48+k}')
    for k in range(4):
        a(f'  v_cvt_pk_bf16_f32 v{16+k}, v{48+2*k}, v{49+2*k}')
    a(f'  ds_write_b128 v60, v[16:19] offset:{L_PIMG}')
    a('''
  v_add_f32 v57, v48, v49
  v_add_f32 v61, v50, v51
  v_add_f32 v62, v52, v53
  v_add_f32 v63, v54, v55
  v_add_f32 v57, v57, v61
  v_add_f32 v62, v62, v63
  v_add_f32 v57, v57, v62''')
    xred(57, 61, 'v_add_f32', ['p16', 'p32'])
    a(f'  ds_write_b32 v59, v57 offset:{L_SSUM}')
    cs('B_sm')
    tbar(C_BP)
    cs('B_barp')
    for ku in range(4):
        a(f'  ds_read_b128 v[{16+4*ku}:{19+4*ku}], v8 offset:{L_PIMG + 1024*ku}')
    a(f'  ds_read_b128 v[32:35], v58 offset:{L_SSUM}')
    for ku in range(4):
        a(f'  s_waitcnt lgkmcnt({4-ku})')
        for t8 in range(8):
            mfma(192 + 4 * t8, PVF[(t8, ku)], 16 + 4 * ku, ku == 0)
    signal(C_S3D)
    cs('B_pv')
    a('''
  v_add_f32 v32, v32, v33
  v_add_f32 v34, v34, v35
  v_add_f32 v32, v32, v34
  v_rcp_f32 v33, v32
  v_log_f32 v34, v32
  v_add_f32 v34, v34, v56''')
    for sl in range(2):
        G = 224 + 12 * sl
        for k in range(16):
            a(f'  v_mul_f32 v{192+16*sl+k}, v{192+16*sl+k}, v33')
        dst = {0: G, 1: G + 1, 2: G + 2, 3: G + 8, 4: G + 4, 5: G + 5, 6: G + 6, 7: G + 9}
        for p in range(8):
            a(f'  v_cvt_pk_bf16_f32 v{dst[p]}, v{192+16*sl+2*p}, v{193+16*sl+2*p}')
        a(f'''
  v_mov_b32 v{G+3}, s88
  v_mov_b32 v{G+7}, s88
  v_mov_b32 v{G+10}, v34
  v_mov_b32 v{G+11}, s88''')
        for i in range(3):
            a(f'  buffer_store_dwordx4 v[{G+4*i}:{G+4*i+3}], v5, s[8:11], s92 offen sc1')
            a('  s_add_u32 s92, s92, 8192')
    cs('B_pub')
    stamp(5)
    a('''
  s_cmp_lt_u32 s5, 18
  s_cbranch_scc1 L_done
  s_mul_i32 s46, s4, 14
  s_add_u32 s46, s46, s5
  s_sub_u32 s46, s46, 18              ; fs''')
    srd(12, 30, 512 * 3584)
    srd(48, 32, 512 * 3584)
    srd(52, 34, 1792 * 1024)
    a(f'''
  v_mul_u32_u24 v9, {8*3584}, v7
  v_and_b32 v11, 7, v1
  v_lshl_add_u32 v9, v11, 2, v9
  s_mul_i32 s65, s6, {128*3584}
  s_lshl_b32 s64, s46, 5
  s_add_u32 s65, s65, s64''')
    for mat in range(2):
        m = 0x00ff00ff if mat == 0 else 0xff00ff00
        a(f'  s_mov_b32 exec_lo, {m}\n  s_mov_b32 exec_hi, {m}\n  s_mov_b32 s64, s65')
        for s in range(4):
            for jj in range(8):
                a(f'  buffer_load_dword v{64+8*s+jj}, v9, s[{12 if mat == 0 else 48}:{15 if mat == 0 else 51}], s64 offen{NT_F}')
                a('  s_add_u32 s64, s64, %d' % (3584 if jj < 7 else 3584 * 25))
    a(f'''
  s_mov_b64 exec, -1
  v_and_b32 v11, 1, v7
  v_lshlrev_b32 v11, 13, v11
  v_lshl_add_u32 v11, v6, 4, v11
  s_lshl_b32 s64, s46, 14
  s_lshl_b32 s65, s6, 8
  s_add_u32 s64, s64, s65''')
    for jj in range(8):
        a(f'  buffer_load_dwordx4 v[{128+4*jj}:{131+4*jj}], v11, s[52:55], s64 offen offset:{(jj&3)*1024}{NT_F}')
        if jj == 3:
            a('  s_add_u32 s64, s64, 4096')
    a(f'''
  v_and_b32 v11, 3, v6
  v_mul_u32_u24 v11, 1040, v11
  v_lshl_add_u32 v11, v7, 4, v11
  s_lshl_b32 s64, s6, 8
  v_add_u32 v11, s64, v11
  v_add_u32 v11, {L_YIMG1}, v11
  s_lshl_b32 s64, s6, 9
  v_lshl_add_u32 v12, v6, 4, s64
  v_add_u32 v12, {L_FRED}, v12
  v_and_b32 v13, 1, v1
  v_lshlrev_b32 v13, 8, v13
  v_bfe_u32 v14, v1, 1, 3
  v_lshl_add_u32 v13, v14, 4, v13
  v_lshrrev_b32 v14, 5, v1
  v_lshl_add_u32 v13, v14, 7, v13
  v_bfe_u32 v14, v1, 4, 1
  v_lshl_add_u32 v13, v14, 2, v13
  v_add_u32 v13, {L_FRED}, v13
  v_lshlrev_b32 v56, 3, v14
  s_lshl_b32 s64, s6, 7
  v_lshlrev_b32 v57, 6, v14
  v_lshl_add_u32 v57, v6, 1, v57
  v_add_u32 v57, s64, v57
  v_and_b32 v58, 1, v6
  v_lshlrev_b32 v58, 6, v58
  v_lshl_add_u32 v58, v7, 4, v58
  v_add_u32 v58, s64, v58
  v_lshl_add_u32 v5, v6, 2, v7
  v_mul_u32_u24 v5, {6*2048}, v5
  s_mul_i32 s95, s6, {48*2048}
  s_lshl_b32 s64, s46, 4
  s_add_u32 s95, s95, s64
  s_add_u32 s95, s95, {WS_R2}
  s_waitcnt vmcnt(8)''')
    for s in range(4):
        perm2(64 + 8 * s, 96 + 8 * s)
    a('  s_waitcnt vmcnt(0)')
    perm8(128, 160)
    prep_granule_tags(GLB)
    stamp(6)
    for ps in range(2):
        wait_cnt(C_Y1 if ps == 0 else C_Y2, 4, sleep=(2 if ps == 0 else 0))
        if ps == 1:
            stamp(7)
            cs('B_y2')
        for s in range(4):
            a(f'  ds_read_b128 v[{16+4*s}:{19+4*s}], v11 offset:{ps*4160 + 64*s}')
        for s in range(4):
            a(f'  s_waitcnt lgkmcnt({3-s})')
            mfma(32, 16 + 4 * s, 96 + 8 * s, s == 0)
            mfma(36, 16 + 4 * s, 100 + 8 * s, s == 0)
        a(f'''
  s_mov_b64 exec, 0xffff
  ds_write_b128 v12, v[32:35] offset:{ps*2048}
  ds_write_b128 v12, v[36:39] offset:{ps*2048 + 256}
  s_mov_b64 exec, -1''')
        signal(C_F1 if ps == 0 else C_F2)
        if ps == 1:
            cs('B_gu')
        wait_cnt(C_F1 if ps == 0 else C_F2, 4 if ps == 0 else 8)
        if ps == 1:
            cs('B_barf')
        for uu in range(4):
            o = (ps * 2048 + uu * 512) // 4
            if o + 2 > 255:
                a(f'  ds_read_b32 v{16+2*uu}, v13 offset:{o*4}\n  ds_read_b32 v{17+2*uu}, v13 offset:{o*4+8}')
            else:
                a(f'  ds_read2_b32 v[{16+2*uu}:{17+2*uu}], v13 offset0:{o} offset1:{o+2}')
        if ps == 1:
            for uu in range(4):
                a(f'  ds_read_b64 v[{24+2*uu}:{25+2*uu}], v56 offset:{L_YST + 16*uu}')
        a('''
  s_waitcnt lgkmcnt(0)
  v_pk_add_f32 v[16:17], v[16:17], v[18:19]
  v_pk_add_f32 v[20:21], v[20:21], v[22:23]''')
        if ps == 0:
            a('  v_pk_add_f32 v[60:61], v[16:17], v[20:21]      ; U1, U2')
    a(f'''
  v_pk_add_f32 v[16:17], v[16:17], v[20:21]
  v_pk_add_f32 v[24:25], v[24:25], v[26:27]
  v_pk_add_f32 v[28:29], v[28:29], v[30:31]
  v_pk_add_f32 v[24:25], v[24:25], v[28:29]
  v_add_f32 v16, v16, v17             ; Y
  v_mul_f32 v24, {f2u(1.0/512)}, v24  ; mean
  v_mov_b32 v26, {f2u(1e-5)}
  v_fmac_f32 v26, {f2u(1.0/512)}, v25
  v_fma_f32 v26, -v24, v24, v26
  v_max_f32 v26, {f2u(1e-5)}, v26
  v_rsq_f32 v26, v26
  v_fma_f32 v16, -v24, v60, v16
  v_fma_f32 v16, v16, v26, v61
  v_mov_b32 v17, v16
  v_permlane32_swap_b32 v16, v17
  v_mul_f32 v18, v16, v16
  v_mov_b32 v19, {f2u(-2*0.7978845608028654*LOG2E)}
  v_fmac_f32 v19, {f2u(-2*0.7978845608028654*0.044715*LOG2E)}, v18
  v_mul_f32 v19, v19, v16
  v_exp_f32 v19, v19
  v_add_f32 v19, 1.0, v19
  v_rcp_f32 v19, v19
  v_mul_f32 v16, v16, v17
  v_mul_f32 v16, v16, v19             ; hh
  v_cvt_pk_bf16_f32 v17, v16, v16
  v_lshlrev_b32 v18, 16, v17
  v_sub_f32 v18, v16, v18
  v_cvt_pk_bf16_f32 v18, v18, v18
  ds_write_b16 v57, v17 offset:{L_HHP}
  ds_write_b16 v57, v18 offset:{L_HHP + 32}
  s_waitcnt lgkmcnt(0)
  ds_read_b128 v[16:19], v58 offset:{L_HHP}
  s_waitcnt lgkmcnt(0)''')
    for i8 in range(8):
        mfma(192 + 4 * i8, 160 + 4 * i8, 16, True)
    cs('B_dn')
    publish_rs(192, GLB, 95, 2048)
    cs('B_pub2')
    stamp(8)
    a('L_done:')
    if DBG:
        stamp(15)
        a('''
  s_memtime s[98:99]
  s_waitcnt lgkmcnt(0)
  v_writelane_b32 v15, s98, 14''')
        a(f'''
  s_lshl_b32 s64, s2, 3
  s_add_u32 s64, s64, s3
  s_lshl_b32 s64, s64, 8
  s_add_u32 s64, s64, {WS_DBG}
  v_lshlrev_b32 v4, 2, v1
  buffer_store_dword v15, v4, s[8:11], s64 offen''')
    if cfg.get('hdbg', -1) >= 0:
        srd(56, 42, 256)
        a(f'''
  s_cmp_lg_u32 s2, {cfg.get('hdbg')}
  s_cbranch_scc1 L_exit
  s_cmp_lg_u32 s3, {cfg.get('hwave', 0)}
  s_cbranch_scc1 L_exit
  v_readlane_b32 s64, v15, 0
  v_subrev_u32 v15, s64, v15
  v_lshlrev_b32 v4, 2, v1
  s_mov_b64 exec, 0xffff
  buffer_store_dword v15, v4, s[56:59], 0 offen''')
    a('''
L_exit:
  s_endpgm''')

    body = a.finish()
    hdr = open('adaLN_cond__compressed_kv_cla__glu_gated_geglu__decode.s.ref').read().split('\n')
    comments = [l for l in hdr if l.startswith(';') and '@launch' not in l and 'Override' not in l and 'grid=ceil' not in l]
    out = '\n'.join(comments) + f'''
; @launch grid=(256,1,1) block=(512,1,1) lds={LDS_BYTES}
.amdgcn_target "amdgcn-amd-amdhsa--gfx950"
.text
.globl {NAME}
.p2align 8
.type {NAME},@function
{NAME}:
{body}.section .rodata,"a"
.p2align 6
.amdhsa_kernel {NAME}
  .amdhsa_next_free_vgpr 256
  .amdhsa_next_free_sgpr 100
  .amdhsa_accum_offset 256
  .amdhsa_group_segment_fixed_size 0
  .amdhsa_kernarg_size 120
  .amdhsa_user_sgpr_count 2
  .amdhsa_user_sgpr_kernarg_segment_ptr 1
  .amdhsa_system_sgpr_workgroup_id_x 1
.end_amdhsa_kernel
'''
    return out


if __name__ == '__main__':
    cfg = {}
    outp = sys.argv[1]
    for kv in sys.argv[2:]:
        k, v = kv.split('=')
        cfg[k] = int(v)
    open(outp, 'w').write(gen(cfg))
    import json
    json.dump(CSNAMES, open(outp + '.names', 'w'))
```

```python
import sys
from asmlib import Asm

NAME = 'adaLN_cond__compressed_kv_cla__glu_gated_geglu__decode_kernel'

WS_H = 0
WS_MOD = 4096
WS_AG = WS_MOD + 16384
WS_QABS = 32768
WS_R1 = WS_QABS + 131072
WS_R2 = WS_R1 + 192 * 4096
WS_P3 = 2 << 20
WS_DBG = 12 << 20
WS_BYTES = 16 << 20

ROWS = 1056
L_QIMG = 0
L_PIMG = L_QIMG + 16384
L_SMAX = L_PIMG + 4096
L_SSUM = L_SMAX + 256
L_CNT = L_SSUM + 256
L_HIMG = L_CNT + 256
L_QRED = L_HIMG + 2048
L_CKV = L_QRED + 4096
LDS_BYTES = L_CKV + 128 * ROWS
assert LDS_BYTES <= 163840
L_SCP = L_QIMG
L_S0RED = L_QIMG + 2048
L_CSCR = L_CKV
L_WSCR = L_CSCR + 18432
L_XCH = L_WSCR + 512
L_XST = L_XCH + 1024
L_CPRIV = L_XST + 64
L_PCTX = L_CPRIV + 1024
L_YIMG1 = L_PCTX + 512
L_YIMG2 = L_YIMG1 + 4160
L_YST = L_YIMG2 + 4160
L_FRED = L_YST + 64
L_HHP = L_FRED + 4096
assert L_HHP + 512 < 65536
C_S0, C_A1, C_A2, C_BQ, C_BM, C_BP, C_S3D, C_A3, C_A4, C_Y1, C_Y2, C_F1, C_F2 = [4 * i for i in range(13)]

CSNAMES = []
TAG = 0x5AC3A7E1
SCALE = 0.08838834764831845 * 1.4426950408889634
LOG2E = 1.4426950408889634


def f2u(x):
    import struct
    return struct.unpack('<I', struct.pack('<f', x))[0]


def gen(cfg):
    a = Asm()
    DBG = cfg.get('dbg', False)
    NT_CKV = ' nt' if cfg.get('nt_ckv', True) else ''
    NT_W = ' nt' if cfg.get('nt_w', False) else ''
    NT_F = ' nt' if cfg.get('nt_f', False) else ''

    def srd(base, ptr, nbytes):
        a(f'''
  s_mov_b32 s{base}, s{ptr}
  s_mov_b32 s{base+1}, s{ptr+1}
  s_mov_b32 s{base+2}, {nbytes}
  s_mov_b32 s{base+3}, 0x00020000''')

    def stamp(k):
        if not DBG:
            return
        a(f'''
  s_memrealtime s[98:99]
  s_waitcnt lgkmcnt(0)
  v_writelane_b32 v15, s98, {k}''')

    cst = {'n': 16}

    def cs(name):
        if not cfg.get('cyc', 0):
            return
        k = cst['n']
        cst['n'] += 1
        CSNAMES.append((k, name))
        a(f'''
  s_memtime s[98:99]
  s_waitcnt lgkmcnt(0)
  v_writelane_b32 v15, s98, {k}''')

    def tmo(lbl_retry):
        a(f'''
  s_sub_u32 s7, s7, 1
  s_cbranch_scc0 {lbl_retry}
  s_branch L_exit''')

    def signal(cnt):
        a(f'''
  s_waitcnt lgkmcnt(0)
  s_mov_b64 exec, 1
  ds_add_u32 v2, v3 offset:{L_CNT + cnt}
  s_mov_b64 exec, -1''')

    def wait_cnt(cnt, target, sleep=0):
        l = a.label('wc')
        d = a.label('wcd')
        a(f'''
{l}:
  ds_read_b32 v4, v2 offset:{L_CNT + cnt}
  s_waitcnt lgkmcnt(0)
  v_readfirstlane_b32 s68, v4
  s_cmp_ge_u32 s68, {target}
  s_cbranch_scc1 {d}''')
        if sleep:
            a(f'  s_sleep {sleep}')
        tmo(l)
        a(f'{d}:')

    def tbar(cnt):
        signal(cnt)
        wait_cnt(cnt, 4)

    def gpoll(loads, tagcheck=None, init_masks=None, sentinel=True):
        n = len(loads)
        for i in range(n):
            m = (init_masks or {}).get(i, None)
            if m is None:
                a(f'  s_mov_b64 s[{70+2*i}:{71+2*i}], -1')
            else:
                a(f'  s_mov_b32 s{70+2*i}, {m & 0xffffffff}\n  s_mov_b32 s{71+2*i}, {m >> 32}')
        if sentinel and n > 1:
            l = a.label('sp')
            d = a.label('spd')
            a(f'{l}:')
            a('  s_mov_b64 exec, s[70:71]')
            a(loads[0][0])
            a(f'''
  s_waitcnt vmcnt(0)
  v_cmp_eq_u32 vcc, s88, v{loads[0][1]}
  s_cbranch_vccnz {d}
  s_sleep 1''')
            tmo(l)
            a(f'{d}:')
        l = a.label('gp')
        d = a.label('gpd')
        a(f'{l}:')
        for i, (txt, tr) in enumerate(loads):
            sk = a.label('gs')
            a(f'  s_mov_b64 exec, s[{70+2*i}:{71+2*i}]\n  s_cbranch_execz {sk}')
            a(txt)
            a(f'{sk}:')
        a('  s_waitcnt vmcnt(0)')
        for i, (txt, tr) in enumerate(loads):
            a(f'  s_mov_b64 exec, s[{70+2*i}:{71+2*i}]')
            if tagcheck:
                tagcheck(i, tr)
            else:
                a(f'  v_cmp_ne_u32_e64 s[{70+2*i}:{71+2*i}], s88, v{tr}')
        a('  s_mov_b64 exec, -1')
        a('  s_mov_b64 s[68:69], s[70:71]')
        for i in range(1, n):
            a(f'  s_or_b64 s[68:69], s[68:69], s[{70+2*i}:{71+2*i}]')
        a(f'''
  s_cmp_eq_u64 s[68:69], 0
  s_cbranch_scc1 {d}''')
        tmo(l)
        a(f'{d}:')

    def xred(v, t, op, steps):
        for st in steps:
            if st[0] == 'r':
                a(f'  {op}_dpp v{v}, v{v}, v{v} row_ror:{st[1:]} row_mask:0xf bank_mask:0xf')
            else:
                a(f'''
  v_mov_b32 v{t}, v{v}
  v_permlane{st[1:]}_swap_b32 v{v}, v{t}
  {op} v{v}, v{v}, v{t}''')

    def perm8(src, dst):
        for c2 in range(4):
            for q in range(4):
                lo = src + 8 * q + c2
                hi = src + 8 * q + 4 + c2
                a(f'  v_perm_b32 v{dst + 8*c2 + q}, v{hi}, v{lo}, s86')
                a(f'  v_perm_b32 v{dst + 8*c2 + 4 + q}, v{hi}, v{lo}, s87')

    def perm2(src, dst):
        for q in range(4):
            a(f'  v_perm_b32 v{dst + q}, v{src + 2*q + 1}, v{src + 2*q}, s86')
            a(f'  v_perm_b32 v{dst + 4 + q}, v{src + 2*q + 1}, v{src + 2*q}, s87')

    def mfma(d, A, B, first):
        c = '0' if first else f'v[{d}:{d+3}]'
        a(f'  v_mfma_f32_16x16x32_bf16 v[{d}:{d+3}], v[{A}:{A+3}], v[{B}:{B+3}], {c}')

    def publish_rs(dacc, gl, soff_base_s, stride_i):
        for r in range(4):
            for h2 in range(4):
                idx = 4 * r + h2
                dst = gl[idx // 3] + (idx % 3)
                a(f'  v_cvt_pk_bf16_f32 v{dst}, v{dacc + 4*(2*h2) + r}, v{dacc + 4*(2*h2+1) + r}')
        a('  s_mov_b32 exec_lo, 0x00030003\n  s_mov_b32 exec_hi, 0x00030003')
        for i in range(6):
            a(f'  buffer_store_dwordx4 v[{gl[i]}:{gl[i]+3}], v5, s[8:11], s{soff_base_s} offen sc1')
            if i < 5:
                a(f'  s_add_u32 s{soff_base_s}, s{soff_base_s}, {stride_i}')
        a('  s_mov_b64 exec, -1')

    def prep_granule_tags(gl):
        for i in range(6):
            a(f'  v_mov_b32 v{gl[i]+3}, s88')
        a(f'  v_mov_b32 v{gl[5]+1}, 0\n  v_mov_b32 v{gl[5]+2}, 0')

    GLA = [224, 228, 232, 236, 184, 188]
    GLB = [224, 228, 232, 236, 240, 244]

    a(f'''
  s_cmp_ge_u32 s2, 256
  s_cbranch_scc1 L_exit
  s_load_dwordx16 s[16:31], s[0:1], 0
  s_load_dwordx8 s[32:39], s[0:1], 64
  s_load_dwordx4 s[40:43], s[0:1], 96
  s_load_dwordx2 s[44:45], s[0:1], 112
  v_and_b32 v1, 63, v0
  v_lshrrev_b32 v4, 6, v0
  v_mov_b32 v2, 0
  v_mov_b32 v3, 1
  v_mov_b32 v15, 0
  v_readfirstlane_b32 s3, v4
  s_and_b32 s4, s2, 7
  s_lshr_b32 s5, s2, 3
  s_and_b32 s6, s3, 3
  s_mov_b32 s7, 3000000
  s_mov_b32 s86, 0x05040100
  s_mov_b32 s87, 0x07060302
  s_mov_b32 s88, {TAG}
  v_lshlrev_b32 v4, 2, v1
  ds_write_b32 v4, v2 offset:{L_CNT}
  v_and_b32 v6, 15, v1
  v_lshrrev_b32 v7, 4, v1
  s_waitcnt lgkmcnt(0)''')
    srd(8, 44, WS_BYTES)
    stamp(0)
    if DBG:
        a('''
  s_memtime s[98:99]
  s_waitcnt lgkmcnt(0)
  v_writelane_b32 v15, s98, 13''')
    a('''
  s_cmp_ge_u32 s3, 4
  s_cbranch_scc1 L_B''')

    a('''
  s_and_b32 s46, s5, 3
  s_lshl_b32 s46, s46, 3
  s_add_u32 s46, s46, s4
  s_lshr_b32 s47, s5, 2''')
    srd(12, 20, 4 << 20)
    srd(48, 22, 4 << 20)
    srd(52, 42, 256)
    a(f'''
  v_lshlrev_b32 v8, 16, v7
  v_lshl_add_u32 v8, v6, 4, v8
  v_lshlrev_b32 v9, 13, v6
  v_lshl_add_u32 v9, v7, 4, v9
  s_lshl_b32 s64, s6, 20              ; 128v*8192
  s_lshl_b32 s65, s46, 8
  s_add_u32 s64, s64, s65
  v_lshlrev_b32 v10, 4, v0
  v_mov_b32 v240, 0
  v_mov_b32 v241, 0
  v_mov_b32 v242, 0
  v_mov_b32 v243, 0
  s_barrier''')
    WQB = [64, 96, 128, 160]
    for s in range(4):
        for jj in range(8):
            a(f'  buffer_load_dwordx4 v[{WQB[s]+4*jj}:{WQB[s]+4*jj+3}], v8, s[12:15], s64 offen{NT_W}')
            a('  s_add_u32 s64, s64, %d' % (8192 if jj < 7 else 8192 * 25))
    a('''
  s_lshl_b32 s64, s47, 6
  s_lshl_b32 s66, s6, 4
  s_add_u32 s64, s64, s66
  s_lshl_b32 s64, s64, 13
  s_add_u32 s64, s64, s65''')
    for s in range(4):
        a(f'  buffer_load_dwordx4 v[{224+4*s}:{227+4*s}], v9, s[48:51], s64 offen offset:{64*s}{NT_W}')
    a(f'''
  s_lshl_b32 s64, s46, 3
  s_add_u32 s64, s64, s47
  s_mul_i32 s64, s64, 24576
  s_add_u32 s89, s64, {WS_P3}
  s_mov_b32 s64, s89''')
    for i in range(6):
        a('  buffer_store_dwordx4 v[240:243], v10, s[8:11], s64 offen sc1')
        if i < 5:
            a('  s_add_u32 s64, s64, 4096')
    a(f'''
  s_mul_i32 s64, s2, 171
  s_lshr_b32 s64, s64, 10
  s_mul_i32 s65, s64, 6
  s_sub_u32 s65, s2, s65              ; i
  s_and_b32 s66, s64, 3               ; g'
  s_lshr_b32 s67, s64, 2
  s_and_b32 s92, s67, 1               ; b
  s_lshr_b32 s67, s67, 1              ; w
  s_lshl_b32 s90, s67, 7
  s_lshl_b32 s66, s66, 5
  s_add_u32 s90, s90, s66
  s_mul_i32 s66, s65, 6
  s_add_u32 s90, s90, s66             ; col0
  s_cmp_eq_u32 s65, 5
  s_cselect_b32 s91, 2, 6
  s_cmp_ge_u32 s2, 192
  s_cbranch_scc1 L_A_noclr
  s_lshl_b32 s64, s2, 12
  s_add_u32 s64, s64, {WS_R1}
  buffer_store_dwordx4 v[240:243], v10, s[8:11], s64 offen sc1
  s_lshl_b32 s64, s2, 11
  s_add_u32 s64, s64, {WS_R2}
  v_lshlrev_b32 v11, 3, v0
  buffer_store_dwordx2 v[240:241], v11, s[8:11], s64 offen sc1
  s_lshl_b32 s64, s92, 9
  s_add_u32 s64, s64, s90
  s_lshl_b32 s64, s64, 3
  s_add_u32 s64, s64, {WS_AG}
  v_cmp_gt_u32 vcc, s91, v0
  s_and_saveexec_b64 s[66:67], vcc
  s_cbranch_execz L_A_noag
  buffer_store_dwordx2 v[240:241], v11, s[8:11], s64 offen sc1
L_A_noag:
  s_mov_b64 exec, -1
L_A_noclr:''')
    assert all((w * 171) >> 10 == w // 6 for w in range(256))
    stamp(1)
    WQF = [192, 64, 96, 128]
    for s in range(4):
        a(f'  s_waitcnt vmcnt({(3-s)*8 + 10})')
        perm8(WQB[s], WQF[s])
    stamp(2)
    a('''
  v_and_b32 v11, 127, v0
  v_lshrrev_b32 v11, 2, v11
  v_lshlrev_b32 v11, 2, v11''')

    def hcheck(i, tr):
        a('''
  v_not_b32 v21, v20
  v_cmp_ne_u32_e64 s[70:71], v20, v18
  v_cmp_ne_u32_e64 s[66:67], v21, v19
  s_or_b64 s[70:71], s[70:71], s[66:67]
  v_cmp_eq_u32_e64 s[66:67], 0, v20
  s_or_b64 s[70:71], s[70:71], s[66:67]''')
    gpoll([(f'  buffer_load_dwordx4 v[16:19], v10, s[8:11], 0 offen sc1\n  buffer_load_dword v20, v11, s[52:55], 0 offen offset:128 sc1', 18)],
          tagcheck=hcheck, sentinel=False)
    a(f'''
  v_lshlrev_b32 v11, 3, v0
  ds_write_b64 v11, v[16:17] offset:{L_HIMG}''')
    stamp(3)
    cs('A_h')
    tbar(C_A1)
    cs('A_bar1')
    a(f'''
  v_and_b32 v11, 1, v6
  v_lshlrev_b32 v11, 10, v11
  v_lshl_add_u32 v11, v7, 4, v11
  s_lshl_b32 s64, s6, 8
  v_add_u32 v11, s64, v11''')
    for s in range(4):
        a(f'  ds_read_b128 v[{48+4*s}:{51+4*s}], v11 offset:{L_HIMG + 64*s}')
    for s in range(4):
        a(f'  s_waitcnt lgkmcnt({3-s})')
        for i8 in range(8):
            mfma(16 + 4 * i8, 48 + 4 * s, WQF[s] + 4 * i8, s == 0)
    a(f'''
  v_lshlrev_b32 v11, 5, v6
  s_lshl_b32 s64, s6, 10
  v_add_u32 v11, s64, v11
  s_mov_b64 exec, 0xffff''')
    for b in range(2):
        for h2 in range(4):
            off = (L_QRED + b * 512 + h2 * 8) // 4
            if b == 0 and h2 == 0:
                a(f'  v_add_u32 v11, {L_QRED}, v11')
            o0 = (b * 512 + h2 * 8) // 4
            a(f'  ds_write2_b32 v11, v{16 + 8*h2 + b}, v{16 + 8*h2 + 4 + b} offset0:{o0} offset1:{o0+1}')
    a('  s_mov_b64 exec, -1')
    cs('A_s1')
    tbar(C_A2)
    cs('A_bar2')
    a(f'''
  v_lshlrev_b32 v11, 4, v1
  ds_read_b128 v[16:19], v11 offset:{L_QRED}
  ds_read_b128 v[20:23], v11 offset:{L_QRED + 1024}
  ds_read_b128 v[24:27], v11 offset:{L_QRED + 2048}
  ds_read_b128 v[28:31], v11 offset:{L_QRED + 3072}
  v_lshlrev_b32 v11, 3, v0            ; qpriv: v*512 + l*8
  v_and_b32 v12, 1, v6
  v_lshlrev_b32 v12, 8, v12
  v_lshl_add_u32 v12, v7, 4, v12
  s_lshl_b32 s64, s6, 9
  v_add_u32 v12, s64, v12
  s_waitcnt lgkmcnt(2)
  v_pk_add_f32 v[16:17], v[16:17], v[20:21]
  v_pk_add_f32 v[18:19], v[18:19], v[22:23]
  s_waitcnt lgkmcnt(0)
  v_pk_add_f32 v[24:25], v[24:25], v[28:29]
  v_pk_add_f32 v[26:27], v[26:27], v[30:31]
  v_pk_add_f32 v[16:17], v[16:17], v[24:25]
  v_pk_add_f32 v[18:19], v[18:19], v[26:27]
  v_cvt_pk_bf16_f32 v16, v16, v17
  v_cvt_pk_bf16_f32 v17, v18, v19
  ds_write_b64 v11, v[16:17] offset:{L_HIMG}
  s_waitcnt lgkmcnt(0)''')
    for s in range(4):
        a(f'  ds_read_b128 v[{48+4*s}:{51+4*s}], v12 offset:{L_HIMG + 64*s}')
    a(f'''
  v_lshlrev_b32 v5, 16, v6            ; b*65536 (lanes n<2)
  v_lshrrev_b32 v11, 1, v7
  v_lshl_add_u32 v5, v11, 9, v5
  v_and_b32 v11, 1, v7
  v_lshl_add_u32 v5, v11, 4, v5
  s_lshr_b32 s64, s46, 4
  s_lshl_b32 s64, s64, 15
  s_lshl_b32 s65, s47, 2
  s_add_u32 s65, s65, s6
  s_lshl_b32 s65, s65, 10             ; (8j+2v)*512
  s_add_u32 s64, s64, s65
  s_and_b32 s65, s46, 15
  s_lshl_b32 s65, s65, 5
  s_add_u32 s64, s64, s65
  s_add_u32 s64, s64, {WS_QABS}
  v_mov_b32 v22, s88
  v_mov_b32 v23, s88''')
    for s in range(4):
        a(f'  s_waitcnt lgkmcnt({3-s})')
        mfma(16, 224 + 4 * s, 48 + 4 * s, s == 0)
    a('''
  v_cvt_pk_bf16_f32 v20, v16, v17
  v_cvt_pk_bf16_f32 v21, v18, v19
  s_mov_b32 exec_lo, 0x00030003
  s_mov_b32 exec_hi, 0x00030003
  buffer_store_dwordx4 v[20:23], v5, s[8:11], s64 offen sc1
  s_mov_b64 exec, -1''')
    cs('A_s2')
    stamp(4)
    srd(12, 26, 4 << 20)
    srd(48, 24, 4 << 20)
    a(f'''
  v_lshlrev_b32 v8, 13, v7
  v_lshl_add_u32 v8, v6, 4, v8
  v_and_b32 v9, 1, v7
  v_lshlrev_b32 v9, 5, v9
  v_lshrrev_b32 v11, 1, v7
  v_lshl_add_u32 v9, v11, 2, v9
  v_lshlrev_b32 v9, 13, v9
  v_lshl_add_u32 v9, v6, 2, v9
  s_lshl_b32 s64, s47, 19             ; 64j*8192
  s_lshl_b32 s65, s46, 8
  s_add_u32 s64, s64, s65
  s_lshl_b32 s65, s6, 6
  s_add_u32 s64, s64, s65''')
    for ks in range(2):
        for jj in range(8):
            ro = 16 * (jj >> 2) + (jj & 3) + 8 * ks
            a(f'  s_add_u32 s65, s64, {ro * 8192}')
            a(f'  buffer_load_dword v{224 + 8*ks + jj}, v9, s[48:51], s65 offen{NT_W}')
    a('''
  s_lshl_b32 s64, s46, 17
  s_lshl_b32 s65, s6, 8
  s_add_u32 s64, s64, s65''')
    for s in range(4):
        for jj in range(8):
            a(f'  buffer_load_dwordx4 v[{WQB[s]+4*jj}:{WQB[s]+4*jj+3}], v8, s[12:15], s64 offen offset:{(jj&3)*1024}{NT_W}')
            if jj == 3:
                a('  s_add_u32 s64, s64, 4096')
            if jj == 7:
                a('  s_add_u32 s64, s64, %d' % (28 * 1024))
    a('  s_waitcnt vmcnt(32)')
    perm2(224, 240)
    perm2(232, 248)
    for s in range(4):
        a(f'  s_waitcnt vmcnt({(3-s)*8})')
        perm8(WQB[s], WQF[s])
    stamp(5)
    srd(48, 16, 2048)
    a(f'''
  s_cmp_lg_u32 s6, 0
  s_cbranch_scc1 L_A_nors0
  s_cmp_ge_u32 s2, 192
  s_cbranch_scc1 L_A_nors0
  v_min_u32 v11, 5, v6
  v_add_u32 v11, s90, v11             ; col
  v_min_u32 v11, 511, v11
  v_lshrrev_b32 v12, 2, v11
  v_lshlrev_b32 v12, 4, v12
  s_lshl_b32 s64, s92, 13
  s_add_u32 s64, s64, {WS_MOD}
  s_add_u32 s65, s64, {384*16}
  s_lshl_b32 s66, s92, 10
  v_lshlrev_b32 v13, 1, v11
  buffer_load_ushort v160, v13, s[48:51], s66 offen''')
    gpoll([('  buffer_load_dwordx4 v[16:19], v12, s[8:11], s64 offen sc1', 18),
           ('  buffer_load_dwordx4 v[20:23], v12, s[8:11], s65 offen sc1', 22)], sentinel=False)
    a('''
  v_and_b32 v13, 2, v11
  v_cmp_ne_u32 vcc, 0, v13
  v_cndmask_b32 v16, v16, v17, vcc
  v_cndmask_b32 v20, v20, v21, vcc
  v_and_b32 v13, 1, v11
  v_lshlrev_b32 v13, 4, v13
  v_lshrrev_b32 v16, v13, v16
  v_lshrrev_b32 v20, v13, v20
  v_lshlrev_b32 v161, 16, v16         ; ga
  v_lshlrev_b32 v162, 16, v20         ; gb
  v_lshlrev_b32 v160, 16, v160        ; x
  v_mov_b32 v12, 0x3f80
  v_mov_b32 v13, 0x3f800000''')
    for q in range(4):
        a(f'''
  v_cmp_eq_u32 vcc, {2*q}, v6
  v_cndmask_b32 v{164+q}, 0, v12, vcc
  v_cmp_eq_u32 vcc, {2*q+1}, v6
  v_cndmask_b32 v{164+q}, v{164+q}, v13, vcc''')
    a('L_A_nors0:')
    wait_cnt(C_S3D, 4, sleep=2)
    a(f'''
  s_cmp_lt_u32 s5, 18
  s_cbranch_scc1 L_A_noffn0
  v_lshrrev_b32 v12, 1, v0
  v_lshlrev_b32 v12, 4, v12           ; (2L>>2)*16''')
    gpoll([(f'  s_mov_b32 s66, {WS_MOD + (0*512 + 256)*16}\n  buffer_load_dwordx4 v[16:19], v12, s[8:11], s66 offen sc1', 18),
           (f'  s_mov_b32 s66, {WS_MOD + (1*512 + 256)*16}\n  buffer_load_dwordx4 v[20:23], v12, s[8:11], s66 offen sc1', 22),
           (f'  s_mov_b32 s66, {WS_MOD + (0*512 + 128)*16}\n  buffer_load_dwordx4 v[24:27], v12, s[8:11], s66 offen sc1', 26),
           (f'  s_mov_b32 s66, {WS_MOD + (1*512 + 128)*16}\n  buffer_load_dwordx4 v[28:31], v12, s[8:11], s66 offen sc1', 30)],
          sentinel=False)
    a(f'''
  v_and_b32 v13, 1, v0
  v_cmp_ne_u32 vcc, 0, v13
  v_cndmask_b32 v16, v16, v17, vcc
  v_cndmask_b32 v20, v20, v21, vcc
  v_cndmask_b32 v24, v24, v25, vcc
  v_cndmask_b32 v28, v28, v29, vcc
  v_lshlrev_b32 v168, 16, v16
  v_and_b32 v169, 0xffff0000, v16
  v_lshlrev_b32 v170, 16, v20
  v_and_b32 v171, 0xffff0000, v20
  v_add_f32 v168, 1.0, v168
  v_add_f32 v169, 1.0, v169
  v_add_f32 v170, 1.0, v170
  v_add_f32 v171, 1.0, v171
  v_cvt_pk_bf16_f32 v16, v168, v169
  v_cvt_pk_bf16_f32 v20, v170, v171
  v_lshlrev_b32 v168, 16, v16
  v_and_b32 v169, 0xffff0000, v16
  v_lshlrev_b32 v170, 16, v20
  v_and_b32 v171, 0xffff0000, v20
  v_lshlrev_b32 v13, 2, v0
  ds_write_b32 v13, v16 offset:{L_YIMG1}
  ds_write_b32 v13, v20 offset:{L_YIMG1 + 1040}
  ds_write_b32 v13, v24 offset:{L_YIMG1 + 2080}
  ds_write_b32 v13, v28 offset:{L_YIMG1 + 3120}''')
    signal(C_Y1)
    a('L_A_noffn0:')
    stamp(6)
    a(f'''
  s_lshl_b32 s64, s6, 11
  v_lshlrev_b32 v11, 4, v1
  v_add_u32 v11, s64, v11             ; (v*128+l)*16
  s_add_u32 s93, s89, 8192
  s_add_u32 s94, s89, 16384
  v_lshrrev_b32 v12, 2, v1
  v_mul_u32_u24 v12, 144, v12
  v_and_b32 v13, 3, v1
  v_lshl_add_u32 v12, v13, 5, v12
  s_mul_i32 s64, s6, {32*144}
  v_add_u32 v12, s64, v12
  v_lshrrev_b32 v13, 2, v6
  v_lshl_add_u32 v13, v7, 3, v13
  v_mul_u32_u24 v13, 144, v13
  v_and_b32 v14, 3, v6
  v_lshl_add_u32 v13, v14, 3, v13
  v_add_u32 v13, s64, v13
  v_lshrrev_b32 v14, 2, v1
  v_lshlrev_b32 v14, 1, v14
  s_lshl_b32 s64, s6, 7
  v_add_u32 v14, s64, v14
  v_and_b32 v172, 1, v6
  v_lshlrev_b32 v172, 6, v172
  v_lshl_add_u32 v172, v7, 4, v172
  v_add_u32 v172, s64, v172
  s_lshl_b32 s64, s6, 8
  v_lshl_add_u32 v173, v6, 2, s64
  s_lshl_b32 s65, s6, 3
  v_mov_b32 v174, s65
  v_lshrrev_b32 v175, 5, v1           ; b
  v_and_b32 v176, 31, v1
  v_lshlrev_b32 v176, 3, v176
  v_lshl_add_u32 v176, v175, 9, v176
  v_lshlrev_b32 v175, 4, v175
  v_lshl_add_u32 v177, v1, 2, s64
  v_and_b32 v178, 1, v6
  v_lshlrev_b32 v178, 7, v178
  v_lshl_add_u32 v178, v7, 4, v178
  v_add_u32 v178, s64, v178
  s_lshl_b32 s64, s6, 6
  v_lshl_add_u32 v179, v6, 2, s64
  v_and_b32 v180, 1, v6
  v_lshlrev_b32 v180, 8, v180
  v_lshl_add_u32 v180, v7, 4, v180
  v_lshl_add_u32 v5, v6, 2, v7
  v_mul_u32_u24 v5, {6*4096}, v5
  s_mul_i32 s95, s6, {48*4096}
  s_lshl_b32 s64, s2, 4
  s_add_u32 s95, s95, s64
  s_add_u32 s95, s95, {WS_R1}''')
    prep_granule_tags(GLA)
    sb = {0: 's89', 1: 's93', 2: 's94'}
    loads = []
    for z in range(2):
        for i in range(3):
            r = 16 + 12 * z + 4 * i
            loads.append((f'  buffer_load_dwordx4 v[{r}:{r+3}], v11, s[8:11], {sb[i]} offen offset:{1024*z} sc1', r + 3))
    gpoll(loads)
    stamp(7)
    cs('A_p3')
    a(f'''
  v_mov_b32 v19, v24
  v_mov_b32 v23, v25
  v_mov_b32 v31, v36
  v_mov_b32 v35, v37
  ds_write_b128 v12, v[16:19] offset:{L_CSCR}
  ds_write_b128 v12, v[20:23] offset:{L_CSCR + 16}
  ds_write_b128 v12, v[28:31] offset:{L_CSCR + 16*144}
  ds_write_b128 v12, v[32:35] offset:{L_CSCR + 16*144 + 16}
  v_max_f32 v40, v26, v38''')
    xred(40, 41, 'v_max_f32', ['r4', 'r8', 'p16', 'p32'])
    a(f'''
  v_sub_f32 v26, v26, v40
  v_sub_f32 v38, v38, v40
  v_exp_f32 v26, v26
  v_exp_f32 v38, v38
  v_cvt_pk_bf16_f32 v42, v26, v38
  v_add_f32 v41, v26, v38
  v_lshlrev_b32 v43, 16, v42
  v_and_b32 v44, 0xffff0000, v42
  v_sub_f32 v43, v26, v43
  v_sub_f32 v44, v38, v44
  v_cvt_pk_bf16_f32 v43, v43, v44
  ds_write_b16 v14, v42 offset:{L_WSCR}
  ds_write_b16_d16_hi v14, v42 offset:{L_WSCR + 32}
  ds_write_b16 v14, v43 offset:{L_WSCR + 64}
  ds_write_b16_d16_hi v14, v43 offset:{L_WSCR + 96}
  s_waitcnt lgkmcnt(0)
  ds_read_b128 v[44:47], v172 offset:{L_WSCR}''')
    for nt in range(4):
        a(f'  ds_read_b64_tr_b16 v[{16+4*nt}:{17+4*nt}], v13 offset:{L_CSCR + 32*nt}')
        a(f'  ds_read_b64_tr_b16 v[{18+4*nt}:{19+4*nt}], v13 offset:{L_CSCR + 32*nt + 4*144}')
    xred(41, 42, 'v_add_f32', ['r4', 'r8', 'p16', 'p32'])
    for nt in range(4):
        a(f'  s_waitcnt lgkmcnt({6-2*nt})')
        mfma(48 + 4 * nt, 44, 16 + 4 * nt, True)
    a('  s_mov_b64 exec, 0xffff')
    for nt in range(4):
        a(f'  v_add_f32 v{48+4*nt}, v{48+4*nt}, v{49+4*nt}')
        a(f'  ds_write_b32 v173, v{48+4*nt} offset:{L_XCH + 64*nt}')
    a(f'''
  ds_write_b64 v174, v[40:41] offset:{L_XST}
  s_mov_b64 exec, -1''')
    cs('A_comb')
    tbar(C_A3)
    cs('A_bar3')
    a(f'''
  ds_read_b128 v[16:19], v175 offset:{L_XST}
  ds_read_b64 v[20:21], v176 offset:{L_XCH}
  ds_read_b64 v[22:23], v176 offset:{L_XCH + 256}
  s_waitcnt lgkmcnt(2)
  v_max_f32 v24, v16, v18
  v_sub_f32 v16, v16, v24
  v_sub_f32 v18, v18, v24
  v_exp_f32 v16, v16
  v_exp_f32 v18, v18
  v_mul_f32 v17, v17, v16
  v_fmac_f32 v17, v19, v18
  v_rcp_f32 v17, v17
  v_mul_f32 v16, v16, v17
  v_mul_f32 v18, v18, v17
  s_waitcnt lgkmcnt(0)
  v_mul_f32 v20, v20, v16
  v_mul_f32 v21, v21, v16
  v_fmac_f32 v20, v22, v18
  v_fmac_f32 v21, v23, v18
  v_cvt_pk_bf16_f32 v20, v20, v21
  ds_write_b32 v177, v20 offset:{L_CPRIV}
  s_waitcnt lgkmcnt(0)
  ds_read_b128 v[16:19], v178 offset:{L_CPRIV}
  ds_read_b128 v[20:23], v178 offset:{L_CPRIV + 64}
  s_waitcnt lgkmcnt(1)''')
    mfma(24, 16, 240, True)
    mfma(28, 16, 244, True)
    a('  s_waitcnt lgkmcnt(0)')
    mfma(24, 20, 248, False)
    mfma(28, 20, 252, False)
    a(f'''
  s_mov_b64 exec, 0xffff
  v_cvt_pk_bf16_f32 v24, v24, v28
  v_cvt_pk_bf16_f32 v25, v25, v29
  ds_write_b32 v179, v24 offset:{L_PCTX}
  ds_write_b32 v179, v25 offset:{L_PCTX + 256}
  s_mov_b64 exec, -1''')
    cs('A_st1')
    tbar(C_A4)
    cs('A_bar4')
    for s in range(4):
        a(f'  ds_read_b128 v[{48+4*s}:{51+4*s}], v180 offset:{L_PCTX + 64*s}')
    for s in range(4):
        a(f'  s_waitcnt lgkmcnt({3-s})')
        for i8 in range(8):
            mfma(16 + 4 * i8, WQF[s] + 4 * i8, 48 + 4 * s, s == 0)
    cs('A_st2')
    publish_rs(16, GLA, 95, 4096)
    cs('A_pub')
    stamp(8)
    a(f'''
  s_cmp_lg_u32 s6, 0
  s_cbranch_scc1 L_A_nors1
  s_cmp_ge_u32 s2, 192
  s_cbranch_scc1 L_A_nors1
  v_lshlrev_b32 v11, 4, v1
  s_lshl_b32 s93, s2, 12
  s_add_u32 s93, s93, {WS_R1}
  s_lshl_b32 s94, s92, 9
  s_add_u32 s94, s94, s90
  s_lshl_b32 s94, s94, 3
  s_add_u32 s94, s94, {WS_AG}
  v_lshlrev_b32 v12, 3, v1
  v_mov_b32 v183, s88''')
    gpoll([(f'  buffer_load_dwordx4 v[{16+4*i}:{19+4*i}], v11, s[8:11], s93 offen offset:{1024*i} sc1', 19 + 4 * i) for i in range(4)])
    for i in range(4):
        a(f'  v_mov_b32 v{19+4*i}, 0')
    for i in range(4):
        mfma(32, 16 + 4 * i, 164, i == 0)
    a('''
  v_add_f32 v32, v32, v33
  v_add_f32 v34, v34, v35
  v_add_f32 v32, v32, v34''')
    xred(32, 33, 'v_add_f32', ['p16', 'p32'])
    a('''
  v_fma_f32 v182, v161, v32, v160     ; x1
  v_cmp_gt_u32 vcc, s91, v1
  s_and_saveexec_b64 s[66:67], vcc
  buffer_store_dwordx2 v[182:183], v12, s[8:11], s94 offen sc1
  s_mov_b64 exec, -1
L_A_nors1:''')
    stamp(9)
    a(f'''
  s_cmp_lt_u32 s5, 18
  s_cbranch_scc1 L_A_noffn1
  v_lshlrev_b32 v13, 2, v0
  s_lshl_b32 s93, s6, 4
  v_mov_b32 v14, s93''')

    def agcheck(i, tr):
        a(f'''
  v_cmp_ne_u32_e64 s[{70+2*i}:{71+2*i}], s88, v{tr}
  v_cmp_ne_u32_e64 s[66:67], s88, v{tr-2}
  s_or_b64 s[{70+2*i}:{71+2*i}], s[{70+2*i}:{71+2*i}], s[66:67]''')
    gpoll([(f'  s_mov_b32 s66, {WS_AG}\n  buffer_load_dwordx4 v[16:19], v10, s[8:11], s66 offen sc1', 19),
           (f'  s_mov_b32 s66, {WS_AG + 4096}\n  buffer_load_dwordx4 v[20:23], v10, s[8:11], s66 offen sc1', 23)],
          tagcheck=agcheck, sentinel=False)
    stamp(10)
    a(f'''
  v_mul_f32 v24, v16, v168
  v_mul_f32 v25, v18, v169
  v_mul_f32 v26, v20, v170
  v_mul_f32 v27, v22, v171
  v_cvt_pk_bf16_f32 v28, v24, v25
  v_cvt_pk_bf16_f32 v29, v26, v27
  ds_write_b32 v13, v28 offset:{L_YIMG2}
  ds_write_b32 v13, v29 offset:{L_YIMG2 + 1040}
  v_lshlrev_b32 v30, 16, v28
  v_and_b32 v31, 0xffff0000, v28
  v_lshlrev_b32 v32, 16, v29
  v_and_b32 v33, 0xffff0000, v29
  v_sub_f32 v24, v24, v30
  v_sub_f32 v25, v25, v31
  v_sub_f32 v26, v26, v32
  v_sub_f32 v27, v27, v33
  v_cvt_pk_bf16_f32 v28, v24, v25
  v_cvt_pk_bf16_f32 v29, v26, v27
  ds_write_b32 v13, v28 offset:{L_YIMG2 + 2080}
  ds_write_b32 v13, v29 offset:{L_YIMG2 + 3120}''')
    signal(C_Y2)
    a('''
  v_add_f32 v24, v16, v18
  v_mul_f32 v25, v16, v16
  v_fmac_f32 v25, v18, v18
  v_add_f32 v26, v20, v22
  v_mul_f32 v27, v20, v20
  v_fmac_f32 v27, v22, v22''')
    for st in ['r1', 'r2', 'r4', 'r8']:
        for v in range(24, 28):
            xred(v, 28, 'v_add_f32', [st])
    for st in ['p16', 'p32']:
        for v in range(24, 28):
            xred(v, v + 4, 'v_add_f32', [st])
    a(f'''
  s_mov_b64 exec, 1
  ds_write_b128 v14, v[24:27] offset:{L_YST}
  s_mov_b64 exec, -1''')
    signal(C_F2)
    a('L_A_noffn1:')
    srd(48, 40, 2048)
    a(f'''
  s_cmp_lg_u32 s6, 0
  s_cbranch_scc1 L_done
  s_cmp_ge_u32 s2, 192
  s_cbranch_scc1 L_done
  s_lshl_b32 s93, s2, 11
  s_add_u32 s93, s93, {WS_R2}
  s_lshl_b32 s94, s92, 9
  s_add_u32 s94, s94, s90
  s_lshl_b32 s94, s94, 1
  v_lshlrev_b32 v12, 1, v1
  v_mov_b32 v20, 0
  v_mov_b32 v21, 0
  v_mov_b32 v22, 0''')
    gpoll([(f'  buffer_load_dwordx4 v[{16+4*i}:{19+4*i}], v11, s[8:11], s93 offen offset:{1024*i} sc1', 19 + 4 * i) for i in range(2)],
          init_masks={1: (1 << 48) - 1})
    stamp(11)
    for i in range(2):
        a(f'  v_mov_b32 v{19+4*i}, 0')
    for i in range(2):
        mfma(32, 16 + 4 * i, 164, i == 0)
    a('''
  v_add_f32 v32, v32, v33
  v_add_f32 v34, v34, v35
  v_add_f32 v32, v32, v34''')
    xred(32, 33, 'v_add_f32', ['p16', 'p32'])
    a('''
  v_fma_f32 v32, v162, v32, v182''')
    if cfg.get('poison', 0):
        a('''
  s_load_dword s64, s[16:17], 0
  s_waitcnt lgkmcnt(0)
  s_cmp_eq_u32 s64, OPQ
  s_cbranch_scc1 L_nopoison
  s_cmp_eq_u32 s64, OPQ
  s_cbranch_scc1 L_nopoison
  v_mov_b32 v32, 0
L_nopoison:''')
    a('''
  v_cvt_pk_bf16_f32 v32, v32, v32
  v_cmp_gt_u32 vcc, s91, v1
  s_and_saveexec_b64 s[66:67], vcc
  buffer_store_short v32, v12, s[48:51], s94 offen
  s_mov_b64 exec, -1
  s_branch L_done''')

    a('L_B:')
    cst['n'] = 40
    a('''
  s_and_b32 s46, s5, 1
  s_lshr_b32 s64, s5, 2
  s_lshl_b32 s64, s64, 1
  s_add_u32 s46, s46, s64
  s_lshl_b32 s47, s46, 3
  s_add_u32 s47, s47, s4
  s_lshr_b32 s89, s5, 1
  s_and_b32 s89, s89, 1
  s_xor_b32 s89, s89, 1
  v_and_b32 v10, 255, v0
  v_mov_b32 v60, 0
  s_mov_b32 s90, 0
  s_cmp_eq_u32 s89, 0
  s_cbranch_scc1 L_B_nos0a
  s_cmp_ge_u32 s46, 12
  s_cbranch_scc1 L_B_nos0a''')
    srd(12, 38, 3 << 20)
    srd(48, 36, 2048)
    srd(52, 16, 2048)
    srd(56, 42, 256)
    a(f'''
  s_cmp_ge_u32 s46, 4
  s_cbranch_scc1 L_B_noncrit
  s_mov_b32 s90, 1
  s_lshl_b32 s91, s4, 2
  s_add_u32 s91, s91, s46             ; t
  s_lshl_b32 s92, s91, 4              ; o1
  s_add_u32 s93, s92, 512             ; o2
  ; epoch
  s_memrealtime s[66:67]
  v_mov_b32 v16, 0
  v_mov_b32 v17, 0
  v_mov_b32 v18, 0
  v_mov_b32 v19, 0
  v_lshlrev_b32 v11, 4, v10
  s_lshl_b32 s64, s91, 12
  s_add_u32 s64, s64, {WS_QABS}
  buffer_store_dwordx4 v[16:19], v11, s[8:11], s64 offen sc1
  s_cmp_ge_u32 s91, 4
  s_cbranch_scc1 L_B_nomclr
  s_lshl_b32 s64, s91, 12
  s_add_u32 s64, s64, {WS_MOD}
  buffer_store_dwordx4 v[16:19], v11, s[8:11], s64 offen sc1
L_B_nomclr:
  s_waitcnt lgkmcnt(0)
  s_or_b32 s94, s66, 1
  s_cmp_lg_u32 s6, 0
  s_cbranch_scc1 L_B_s0ld
  s_lshl_b32 s64, s91, 2
  v_mov_b32 v12, s64
  v_mov_b32 v13, s94
  s_mov_b64 exec, 1
  buffer_store_dword v13, v12, s[56:59], 0 offen offset:128 sc1
  s_mov_b64 exec, -1
  s_branch L_B_s0ld
L_B_noncrit:
  s_mov_b32 s90, 2
  s_lshl_b32 s91, s4, 3
  s_add_u32 s91, s91, s46
  s_sub_u32 s91, s91, 4               ; t'
  s_lshl_b32 s92, s91, 5
  s_add_u32 s92, s92, 1024
  s_add_u32 s93, s92, 16
L_B_s0ld:
  v_lshrrev_b32 v11, 5, v1            ; b
  v_and_b32 v12, 31, v1
  v_lshlrev_b32 v13, 10, v11
  v_lshl_add_u32 v14, v12, 3, v13
  s_lshl_b32 s64, s6, 8
  buffer_load_dwordx2 v[16:17], v14, s[48:51], s64 offen
  v_lshl_add_u32 v14, v12, 5, v13
  buffer_load_dwordx4 v[20:23], v14, s[52:55], 0 offen
  buffer_load_dwordx4 v[24:27], v14, s[52:55], 0 offen offset:16
  s_and_b32 s64, s92, 511
  s_lshl_b32 s64, s64, 1
  v_lshl_add_u32 v14, v6, 1, v13
  buffer_load_ushort v28, v14, s[52:55], s64 offen
  v_mul_u32_u24 v8, {8*6144}, v7
  v_and_b32 v9, 7, v1
  v_lshl_add_u32 v8, v9, 2, v8
  v_and_b32 v9, 8, v1
  v_cmp_ne_u32 vcc, 0, v9
  v_mov_b32 v9, s92
  v_mov_b32 v14, s93
  v_cndmask_b32 v9, v9, v14, vcc
  v_lshl_add_u32 v8, v9, 1, v8
  s_mul_i32 s64, s6, {128*6144}''')
    for s in range(4):
        for jj in range(8):
            a(f'  buffer_load_dword v{64+8*s+jj}, v8, s[12:15], s64 offen')
            a('  s_add_u32 s64, s64, %d' % (6144 if jj < 7 else 6144 * 25))
    a('''
L_B_nos0a:
  s_barrier
  s_cmp_eq_u32 s90, 0
  s_cbranch_scc1 L_B_nos0b
  s_waitcnt vmcnt(35)
  v_lshlrev_b32 v30, 16, v16
  v_and_b32 v31, 0xffff0000, v16
  v_lshlrev_b32 v32, 16, v17
  v_and_b32 v33, 0xffff0000, v17''')
    a(f'  s_mov_b32 s64, {f2u(-LOG2E)}')
    for k in range(4):
        a(f'  v_mul_f32 v{34+k}, s64, v{30+k}')
    for k in range(4):
        a(f'  v_exp_f32 v{34+k}, v{34+k}')
    for k in range(4):
        a(f'  v_add_f32 v{34+k}, 1.0, v{34+k}')
    for k in range(4):
        a(f'  v_rcp_f32 v{34+k}, v{34+k}')
    for k in range(4):
        a(f'  v_mul_f32 v{30+k}, v{30+k}, v{34+k}')
    a(f'''
  v_cvt_pk_bf16_f32 v16, v30, v31
  v_cvt_pk_bf16_f32 v17, v32, v33
  v_lshlrev_b32 v14, 3, v10
  ds_write_b64 v14, v[16:17] offset:{L_SCP}
  v_and_b32 v14, 1, v6
  v_lshlrev_b32 v14, 8, v14
  v_lshl_add_u32 v14, v7, 4, v14
  s_lshl_b32 s64, s6, 9
  v_add_u32 v14, s64, v14
  s_waitcnt lgkmcnt(0)''')
    for s in range(4):
        a(f'  ds_read_b128 v[{32+4*s}:{35+4*s}], v14 offset:{L_SCP + 64*s}')
    a('  s_waitcnt vmcnt(32)')
    for k in range(8):
        a(f'  v_lshlrev_b32 v{128+2*k}, 16, v{20+k}\n  v_and_b32 v{129+2*k}, 0xffff0000, v{20+k}')
    a('  v_add_f32 v56, v128, v129')
    for k in range(2, 16):
        a(f'  v_add_f32 v56, v56, v{128+k}')
    xred(56, 57, 'v_add_f32', ['r1', 'r2', 'r4', 'r8', 'p16'])
    a(f'  v_mul_f32 v56, {f2u(1.0/512)}, v56')
    a('  v_mov_b32 v57, 0')
    for k in range(16):
        a(f'  v_sub_f32 v{128+k}, v{128+k}, v56\n  v_fmac_f32 v57, v{128+k}, v{128+k}')
    xred(57, 58, 'v_add_f32', ['r1', 'r2', 'r4', 'r8', 'p16'])
    a(f'''
  v_mov_b32 v58, {f2u(1e-5)}
  v_fmac_f32 v58, {f2u(1.0/512)}, v57
  v_rsq_f32 v57, v58
  v_lshlrev_b32 v28, 16, v28
  v_sub_f32 v28, v28, v56
  v_mul_f32 v28, v28, v57''')
    for s in range(4):
        a(f'  s_waitcnt vmcnt({24-8*s})')
        perm2(64 + 8 * s, 96 + 8 * s)
    a('  s_waitcnt lgkmcnt(0)')
    for s in range(4):
        mfma(48, 32 + 4 * s, 96 + 8 * s, s == 0)
        mfma(52, 32 + 4 * s, 100 + 8 * s, s == 0)
    a(f'''
  s_lshl_b32 s64, s6, 8
  v_lshl_add_u32 v14, v6, 3, s64
  s_mov_b64 exec, 0xffff
  ds_write_b64 v14, v[48:49] offset:{L_S0RED}
  ds_write_b64 v14, v[52:53] offset:{L_S0RED + 128}
  s_mov_b64 exec, -1''')
    signal(C_S0)
    a('''
  s_cmp_lg_u32 s6, 0
  s_cbranch_scc1 L_B_nos0b''')
    a('''
  v_and_b32 v14, 1, v1
  v_lshlrev_b32 v14, 7, v14
  v_bfe_u32 v13, v1, 1, 4             ; mat*8 + n2
  v_lshl_add_u32 v14, v13, 3, v14
  v_lshl_add_u32 v14, v11, 2, v14
  v_xor_b32 v13, 64, v14''')
    wait_cnt(C_S0, 4)
    for uu in range(4):
        a(f'  ds_read_b32 v{32+uu}, v14 offset:{L_S0RED + 256*uu}')
        a(f'  ds_read_b32 v{36+uu}, v13 offset:{L_S0RED + 256*uu}')
    a(f'''
  s_waitcnt lgkmcnt(0)
  v_add_f32 v32, v32, v33
  v_add_f32 v34, v34, v35
  v_add_f32 v36, v36, v37
  v_add_f32 v38, v38, v39
  v_add_f32 v32, v32, v34             ; own
  v_add_f32 v36, v36, v38             ; other
  s_cmp_eq_u32 s90, 2
  s_cbranch_scc1 L_B_s0pack
  v_add_f32 v36, 1.0, v36
  v_fmac_f32 v32, v28, v36
L_B_s0pack:
  v_mov_b32_dpp v33, v32 quad_perm:[1,1,3,3] row_mask:0xf bank_mask:0xf
  v_cvt_pk_bf16_f32 v56, v32, v33
  v_mov_b32_dpp v57, v56 quad_perm:[2,2,2,2] row_mask:0xf bank_mask:0xf
  s_cmp_eq_u32 s90, 2
  s_cbranch_scc1 L_B_s0nc
  v_mov_b32 v58, s94
  v_not_b32 v59, v58
  v_lshlrev_b32 v60, 11, v11
  v_lshl_add_u32 v60, v6, 2, v60      ; (cidx/4)*16 = cidx*4 for cidx%4==0
  s_lshl_b32 s64, s91, 6
  s_mov_b32 exec_lo, 0x00001111
  s_mov_b32 exec_hi, 0x00001111
  buffer_store_dwordx4 v[56:59], v60, s[8:11], s64 offen sc1
  s_mov_b64 exec, -1
  s_branch L_B_nos0b
L_B_s0nc:
  v_mov_b32 v58, s88
  v_mov_b32 v59, s88
  v_lshlrev_b32 v60, 13, v11
  v_lshl_add_u32 v60, v12, 2, v60     ; b*8192 + (lane&31)*4
  s_lshl_b32 s95, s91, 7
  s_add_u32 s95, s95, {WS_MOD}
L_B_nos0b:''')
    stamp(1)
    srd(12, 18, 16 << 20)
    a(f'''
  v_lshlrev_b32 v8, 4, v1
  s_lshl_b32 s64, s47, 17
  s_lshl_b32 s65, s6, 15
  s_add_u32 s64, s64, s65
  s_mul_i32 s65, s6, {32*ROWS}
  s_add_u32 s65, s65, {L_CKV}''')
    for r in range(32):
        a(f'''
  s_mov_b32 m0, s65
  s_add_u32 s65, s65, {ROWS}
  buffer_load_dwordx4 v8, s[12:15], s64 offen{NT_CKV} lds
  s_add_u32 s64, s64, 1024''')
    a(f'''
  v_mul_u32_u24 v9, {ROWS}, v6
  v_lshl_add_u32 v9, v7, 4, v9
  s_mul_i32 s65, s6, {32*ROWS}
  s_add_u32 s65, s65, {L_CKV}
  v_add_u32 v9, s65, v9
  v_lshrrev_b32 v11, 2, v6
  v_lshl_add_u32 v11, v7, 2, v11
  v_mul_u32_u24 v11, {ROWS}, v11
  v_and_b32 v12, 3, v6
  v_lshl_add_u32 v11, v12, 3, v11
  s_lshl_b32 s65, s6, 8
  s_add_u32 s65, s65, {L_CKV}
  v_add_u32 v11, s65, v11
  v_add_u32 v12, {64*ROWS}, v11       ; (ku>=2)
  v_lshlrev_b32 v13, 4, v10           ; L*16
  v_lshlrev_b32 v14, 3, v10           ; L*8
  s_lshr_b32 s64, s47, 6
  s_lshl_b32 s64, s64, 1
  s_add_u32 s64, s64, s89
  s_lshl_b32 s64, s64, 15
  s_add_u32 s91, s64, {WS_QABS}''')
    stamp(2)
    for kt in range(2):
        a(f'  s_waitcnt vmcnt({16-16*kt})')
        for s in range(16):
            r = 64 + 64 * kt + 4 * s
            a(f'  ds_read_b128 v[{r}:{r+3}], v9 offset:{kt*16*ROWS + 64*s}')
    stamp(3)
    wait_cnt(C_A1, 4, sleep=1)
    a('''
  s_cmp_lg_u32 s90, 2
  s_cbranch_scc1 L_B_nomod
  s_cmp_lg_u32 s6, 0
  s_cbranch_scc1 L_B_nomod
  s_mov_b32 exec_lo, 0x11111111
  s_mov_b32 exec_hi, 0x11111111
  buffer_store_dwordx4 v[56:59], v60, s[8:11], s95 offen sc1
  s_mov_b64 exec, -1
L_B_nomod:''')
    a(f'''
  v_mul_u32_u24 v5, 0x30000, v6
  v_lshl_add_u32 v5, v7, 4, v5
  s_mul_i32 s92, s89, {16*196608}
  s_lshl_b32 s64, s47, 6
  s_add_u32 s92, s92, s64
  s_mul_i32 s64, s6, {6*8192}
  s_add_u32 s92, s92, s64
  s_add_u32 s92, s92, {WS_P3}
  v_lshlrev_b32 v58, 4, v6
  s_lshl_b32 s64, s6, 2
  v_add_u32 v59, s64, v58
  s_lshl_b32 s64, s6, 10
  v_add_u32 v60, s64, v8
  s_mov_b32 s93, {f2u(SCALE)}''')
    gpoll([(f'  s_add_u32 s66, s91, {4096*i}\n  buffer_load_dwordx4 v[{16+4*i}:{19+4*i}], v13, s[8:11], s66 offen sc1', 18 + 4 * i) for i in range(8)])
    stamp(4)
    cs('B_q')
    for i in range(8):
        a(f'  ds_write_b64 v14, v[{16+4*i}:{17+4*i}] offset:{L_QIMG + 2048*i}')
    tbar(C_BQ)
    cs('B_barq')
    for s in range(16):
        a(f'  ds_read_b128 v[{192+4*s}:{195+4*s}], v8 offset:{L_QIMG + 1024*s}')
    PVF = {}

    def trr(s_, kt):
        r = 64 + 64 * kt + 4 * s_
        q = 2 * s_ + kt
        t8, ku = q & 7, q >> 3
        PVF[(t8, ku)] = r
        base = 'v11' if ku < 2 else 'v12'
        off = (ku & 1) * 32 * ROWS + 32 * t8
        a(f'  ds_read_b64_tr_b16 v[{r}:{r+1}], {base} offset:{off}')
        a(f'  ds_read_b64_tr_b16 v[{r+2}:{r+3}], {base} offset:{off + 16*ROWS}')
    for s in range(16):
        if s < 8:
            a(f'  s_waitcnt lgkmcnt({15 - s})')
        if s == 8:
            a('  s_waitcnt lgkmcnt(0)')
        for kt in range(2):
            r = 64 + 64 * kt + 4 * s
            mfma(48 + 4 * kt, r, 192 + 4 * s, s == 0)
        if s >= 8:
            for kt in range(2):
                trr(s - 8, kt)
            for kt in range(2):
                trr(s, kt)
    a('''
  v_max3_f32 v56, v48, v49, v50
  v_max3_f32 v56, v56, v51, v52
  v_max3_f32 v56, v56, v53, v54
  v_max_f32 v56, v56, v55''')
    xred(56, 57, 'v_max_f32', ['p16', 'p32'])
    a(f'''
  ds_write_b32 v59, v56 offset:{L_SMAX}''')
    cs('B_qk')
    tbar(C_BM)
    cs('B_barm')
    a(f'''
  ds_read_b128 v[16:19], v58 offset:{L_SMAX}
  s_waitcnt lgkmcnt(0)
  v_max3_f32 v56, v16, v17, v18
  v_max_f32 v56, v56, v19
  v_mul_f32 v56, s93, v56''')
    for k in range(8):
        a(f'  v_fma_f32 v{48+k}, v{48+k}, s93, -v56')
    for k in range(8):
        a(f'  v_exp_f32 v{48+k}, v{48+k}')
    for k in range(4):
        a(f'  v_cvt_pk_bf16_f32 v{16+k}, v{48+2*k}, v{49+2*k}')
    a(f'  ds_write_b128 v60, v[16:19] offset:{L_PIMG}')
    a('''
  v_add_f32 v57, v48, v49
  v_add_f32 v61, v50, v51
  v_add_f32 v62, v52, v53
  v_add_f32 v63, v54, v55
  v_add_f32 v57, v57, v61
  v_add_f32 v62, v62, v63
  v_add_f32 v57, v57, v62''')
    xred(57, 61, 'v_add_f32', ['p16', 'p32'])
    a(f'  ds_write_b32 v59, v57 offset:{L_SSUM}')
    cs('B_sm')
    tbar(C_BP)
    cs('B_barp')
    for ku in range(4):
        a(f'  ds_read_b128 v[{16+4*ku}:{19+4*ku}], v8 offset:{L_PIMG + 1024*ku}')
    a(f'  ds_read_b128 v[32:35], v58 offset:{L_SSUM}')
    for ku in range(4):
        a(f'  s_waitcnt lgkmcnt({4-ku})')
        for t8 in range(8):
            mfma(192 + 4 * t8, PVF[(t8, ku)], 16 + 4 * ku, ku == 0)
    signal(C_S3D)
    cs('B_pv')
    a('''
  v_add_f32 v32, v32, v33
  v_add_f32 v34, v34, v35
  v_add_f32 v32, v32, v34
  v_rcp_f32 v33, v32
  v_log_f32 v34, v32
  v_add_f32 v34, v34, v56''')
    for sl in range(2):
        G = 224 + 12 * sl
        for k in range(16):
            a(f'  v_mul_f32 v{192+16*sl+k}, v{192+16*sl+k}, v33')
        dst = {0: G, 1: G + 1, 2: G + 2, 3: G + 8, 4: G + 4, 5: G + 5, 6: G + 6, 7: G + 9}
        for p in range(8):
            a(f'  v_cvt_pk_bf16_f32 v{dst[p]}, v{192+16*sl+2*p}, v{193+16*sl+2*p}')
        a(f'''
  v_mov_b32 v{G+3}, s88
  v_mov_b32 v{G+7}, s88
  v_mov_b32 v{G+10}, v34
  v_mov_b32 v{G+11}, s88''')
        for i in range(3):
            a(f'  buffer_store_dwordx4 v[{G+4*i}:{G+4*i+3}], v5, s[8:11], s92 offen sc1')
            a('  s_add_u32 s92, s92, 8192')
    cs('B_pub')
    stamp(5)
    a('''
  s_cmp_lt_u32 s5, 18
  s_cbranch_scc1 L_done
  s_mul_i32 s46, s4, 14
  s_add_u32 s46, s46, s5
  s_sub_u32 s46, s46, 18              ; fs''')
    srd(12, 30, 512 * 3584)
    srd(48, 32, 512 * 3584)
    srd(52, 34, 1792 * 1024)
    a(f'''
  v_mul_u32_u24 v9, {8*3584}, v7
  v_and_b32 v11, 7, v1
  v_lshl_add_u32 v9, v11, 2, v9
  s_mul_i32 s65, s6, {128*3584}
  s_lshl_b32 s64, s46, 5
  s_add_u32 s65, s65, s64''')
    for mat in range(2):
        m = 0x00ff00ff if mat == 0 else 0xff00ff00
        a(f'  s_mov_b32 exec_lo, {m}\n  s_mov_b32 exec_hi, {m}\n  s_mov_b32 s64, s65')
        for s in range(4):
            for jj in range(8):
                a(f'  buffer_load_dword v{64+8*s+jj}, v9, s[{12 if mat == 0 else 48}:{15 if mat == 0 else 51}], s64 offen{NT_F}')
                a('  s_add_u32 s64, s64, %d' % (3584 if jj < 7 else 3584 * 25))
    a(f'''
  s_mov_b64 exec, -1
  v_and_b32 v11, 1, v7
  v_lshlrev_b32 v11, 13, v11
  v_lshl_add_u32 v11, v6, 4, v11
  s_lshl_b32 s64, s46, 14
  s_lshl_b32 s65, s6, 8
  s_add_u32 s64, s64, s65''')
    for jj in range(8):
        a(f'  buffer_load_dwordx4 v[{128+4*jj}:{131+4*jj}], v11, s[52:55], s64 offen offset:{(jj&3)*1024}{NT_F}')
        if jj == 3:
            a('  s_add_u32 s64, s64, 4096')
    a(f'''
  v_and_b32 v11, 3, v6
  v_mul_u32_u24 v11, 1040, v11
  v_lshl_add_u32 v11, v7, 4, v11
  s_lshl_b32 s64, s6, 8
  v_add_u32 v11, s64, v11
  v_add_u32 v11, {L_YIMG1}, v11
  s_lshl_b32 s64, s6, 9
  v_lshl_add_u32 v12, v6, 4, s64
  v_add_u32 v12, {L_FRED}, v12
  v_and_b32 v13, 1, v1
  v_lshlrev_b32 v13, 8, v13
  v_bfe_u32 v14, v1, 1, 3
  v_lshl_add_u32 v13, v14, 4, v13
  v_lshrrev_b32 v14, 5, v1
  v_lshl_add_u32 v13, v14, 7, v13
  v_bfe_u32 v14, v1, 4, 1
  v_lshl_add_u32 v13, v14, 2, v13
  v_add_u32 v13, {L_FRED}, v13
  v_lshlrev_b32 v56, 3, v14
  s_lshl_b32 s64, s6, 7
  v_lshlrev_b32 v57, 6, v14
  v_lshl_add_u32 v57, v6, 1, v57
  v_add_u32 v57, s64, v57
  v_and_b32 v58, 1, v6
  v_lshlrev_b32 v58, 6, v58
  v_lshl_add_u32 v58, v7, 4, v58
  v_add_u32 v58, s64, v58
  v_lshl_add_u32 v5, v6, 2, v7
  v_mul_u32_u24 v5, {6*2048}, v5
  s_mul_i32 s95, s6, {48*2048}
  s_lshl_b32 s64, s46, 4
  s_add_u32 s95, s95, s64
  s_add_u32 s95, s95, {WS_R2}
  s_waitcnt vmcnt(8)''')
    for s in range(4):
        perm2(64 + 8 * s, 96 + 8 * s)
    a('  s_waitcnt vmcnt(0)')
    perm8(128, 160)
    prep_granule_tags(GLB)
    stamp(6)
    for ps in range(2):
        wait_cnt(C_Y1 if ps == 0 else C_Y2, 4, sleep=(2 if ps == 0 else 0))
        if ps == 1:
            stamp(7)
            cs('B_y2')
        for s in range(4):
            a(f'  ds_read_b128 v[{16+4*s}:{19+4*s}], v11 offset:{ps*4160 + 64*s}')
        for s in range(4):
            a(f'  s_waitcnt lgkmcnt({3-s})')
            mfma(32, 16 + 4 * s, 96 + 8 * s, s == 0)
            mfma(36, 16 + 4 * s, 100 + 8 * s, s == 0)
        a(f'''
  s_mov_b64 exec, 0xffff
  ds_write_b128 v12, v[32:35] offset:{ps*2048}
  ds_write_b128 v12, v[36:39] offset:{ps*2048 + 256}
  s_mov_b64 exec, -1''')
        signal(C_F1 if ps == 0 else C_F2)
        if ps == 1:
            cs('B_gu')
        wait_cnt(C_F1 if ps == 0 else C_F2, 4 if ps == 0 else 8)
        if ps == 1:
            cs('B_barf')
        for uu in range(4):
            o = (ps * 2048 + uu * 512) // 4
            if o + 2 > 255:
                a(f'  ds_read_b32 v{16+2*uu}, v13 offset:{o*4}\n  ds_read_b32 v{17+2*uu}, v13 offset:{o*4+8}')
            else:
                a(f'  ds_read2_b32 v[{16+2*uu}:{17+2*uu}], v13 offset0:{o} offset1:{o+2}')
        if ps == 1:
            for uu in range(4):
                a(f'  ds_read_b64 v[{24+2*uu}:{25+2*uu}], v56 offset:{L_YST + 16*uu}')
        a('''
  s_waitcnt lgkmcnt(0)
  v_pk_add_f32 v[16:17], v[16:17], v[18:19]
  v_pk_add_f32 v[20:21], v[20:21], v[22:23]''')
        if ps == 0:
            a('  v_pk_add_f32 v[60:61], v[16:17], v[20:21]      ; U1, U2')
    a(f'''
  v_pk_add_f32 v[16:17], v[16:17], v[20:21]
  v_pk_add_f32 v[24:25], v[24:25], v[26:27]
  v_pk_add_f32 v[28:29], v[28:29], v[30:31]
  v_pk_add_f32 v[24:25], v[24:25], v[28:29]
  v_add_f32 v16, v16, v17             ; Y
  v_mul_f32 v24, {f2u(1.0/512)}, v24  ; mean
  v_mov_b32 v26, {f2u(1e-5)}
  v_fmac_f32 v26, {f2u(1.0/512)}, v25
  v_fma_f32 v26, -v24, v24, v26
  v_max_f32 v26, {f2u(1e-5)}, v26
  v_rsq_f32 v26, v26
  v_fma_f32 v16, -v24, v60, v16
  v_fma_f32 v16, v16, v26, v61
  v_mov_b32 v17, v16
  v_permlane32_swap_b32 v16, v17
  v_mul_f32 v18, v16, v16
  v_mov_b32 v19, {f2u(-2*0.7978845608028654*LOG2E)}
  v_fmac_f32 v19, {f2u(-2*0.7978845608028654*0.044715*LOG2E)}, v18
  v_mul_f32 v19, v19, v16
  v_exp_f32 v19, v19
  v_add_f32 v19, 1.0, v19
  v_rcp_f32 v19, v19
  v_mul_f32 v16, v16, v17
  v_mul_f32 v16, v16, v19             ; hh
  v_cvt_pk_bf16_f32 v17, v16, v16
  v_lshlrev_b32 v18, 16, v17
  v_sub_f32 v18, v16, v18
  v_cvt_pk_bf16_f32 v18, v18, v18
  ds_write_b16 v57, v17 offset:{L_HHP}
  ds_write_b16 v57, v18 offset:{L_HHP + 32}
  s_waitcnt lgkmcnt(0)
  ds_read_b128 v[16:19], v58 offset:{L_HHP}
  s_waitcnt lgkmcnt(0)''')
    for i8 in range(8):
        mfma(192 + 4 * i8, 160 + 4 * i8, 16, True)
    cs('B_dn')
    publish_rs(192, GLB, 95, 2048)
    cs('B_pub2')
    stamp(8)
    a('L_done:')
    if DBG:
        stamp(15)
        a('''
  s_memtime s[98:99]
  s_waitcnt lgkmcnt(0)
  v_writelane_b32 v15, s98, 14''')
        a(f'''
  s_lshl_b32 s64, s2, 3
  s_add_u32 s64, s64, s3
  s_lshl_b32 s64, s64, 8
  s_add_u32 s64, s64, {WS_DBG}
  v_lshlrev_b32 v4, 2, v1
  buffer_store_dword v15, v4, s[8:11], s64 offen''')
    if cfg.get('hdbg', -1) >= 0:
        srd(56, 42, 256)
        a(f'''
  v_readlane_b32 s64, v15, 0
  v_readlane_b32 s65, v15, 15
  s_not_b32 s66, s64
  v_mov_b32 v16, s66
  v_mov_b32 v17, s64
  v_mov_b32 v18, s65
  s_mov_b64 exec, 1
  buffer_atomic_umax v16, v2, s[56:59], 0 offen offset:48 sc1
  buffer_atomic_umax v17, v2, s[56:59], 0 offen offset:52 sc1
  buffer_atomic_umax v18, v2, s[56:59], 0 offen offset:56 sc1
  s_mov_b64 exec, -1
  s_cmp_lg_u32 s2, {cfg.get('hdbg')}
  s_cbranch_scc1 L_exit
  s_cmp_lg_u32 s3, {cfg.get('hwave', 0)}
  s_cbranch_scc1 L_exit
  v_subrev_u32 v15, s64, v15
  v_writelane_b32 v15, s64, 0
  v_lshlrev_b32 v4, 2, v1
  s_mov_b64 exec, 0x8fff
  buffer_store_dword v15, v4, s[56:59], 0 offen''')
    a('''
L_exit:
  s_endpgm''')

    body = a.finish()
    hdr = open('adaLN_cond__compressed_kv_cla__glu_gated_geglu__decode.s.ref').read().split('\n')
    comments = [l for l in hdr if l.startswith(';') and '@launch' not in l and 'Override' not in l and 'grid=ceil' not in l]
    out = '\n'.join(comments) + f'''
; @launch grid=(256,1,1) block=(512,1,1) lds={LDS_BYTES}
.amdgcn_target "amdgcn-amd-amdhsa--gfx950"
.text
.globl {NAME}
.p2align 8
.type {NAME},@function
{NAME}:
{body}.section .rodata,"a"
.p2align 6
.amdhsa_kernel {NAME}
  .amdhsa_next_free_vgpr 256
  .amdhsa_next_free_sgpr 100
  .amdhsa_accum_offset 256
  .amdhsa_group_segment_fixed_size 0
  .amdhsa_kernarg_size 120
  .amdhsa_user_sgpr_count 2
  .amdhsa_user_sgpr_kernarg_segment_ptr 1
  .amdhsa_system_sgpr_workgroup_id_x 1
.end_amdhsa_kernel
'''
    return out


if __name__ == '__main__':
    cfg = {}
    outp = sys.argv[1]
    for kv in sys.argv[2:]:
        k, v = kv.split('=')
        cfg[k] = int(v)
    open(outp, 'w').write(gen(cfg))
    import json
    json.dump(CSNAMES, open(outp + '.names', 'w'))
```

```python
import sys
import struct
from asmlib import Asm

NAME = 'adaLN_cond__compressed_kv_cla__glu_gated_geglu__decode_kernel'

WS_H = 0
WS_QABS = 65536
WS_R1 = WS_QABS + 131072
WS_R2 = WS_R1 + 524288
WS_MOD = WS_R2 + 112 * 4096
WS_AG = WS_MOD + 65536
WS_P3 = 2 << 20
WS_DBG = 12 << 20
WS_BYTES = 16 << 20

ROWS = 1056
L_QIMG = 0
L_PIMG = 16384
L_SMAX = L_PIMG + 8192
L_SSUM = L_SMAX + 512
L_CNT = L_SSUM + 512
L_CKV = L_CNT + 256
L_QIMG1 = L_CKV
L_OUT = L_CKV + 16384
OUTS = 16 * 1552
LDS_BYTES = L_CKV + 128 * ROWS
assert LDS_BYTES <= 163840
L_HIMG = 0
L_QRED = 8320
L_QPRIV = 16512
L_SCP = 18560
L_S0RED = 19072
L_EP = 20096
L_PCTX = 20224
assert L_PCTX + 2176 <= L_CNT
L_YIMG1 = 0
L_YIMG2 = L_YIMG1 + 4160
L_YST = L_YIMG2 + 4160
L_FRED = L_YST + 128
L_HHP = L_FRED + 4096
assert L_HHP + 512 <= 16384
L_MIMG = L_CKV
L_MRED = L_MIMG + 4096
L_TB = L_MRED + 8192
TS = 21504
L_CSCR = 0
L_WPRIV = 18432
L_CPRIV = L_WPRIV + 1024
L_RSX = L_CPRIV + 256
assert L_RSX + 1024 <= TS
(C_S0, C_H, C_A2, C_KV, C_PVF, C_Q, C_M0, C_M1, C_P0, C_P1, C_Y1, C_Y2, C_F1, C_F2, C_SC, C_QK, C_EP, C_C1, C_A3, C_O0, C_O1, C_ST) = [4 * i for i in range(22)]
C_G3, C_RS1, C_RS2 = 128, 132, 136

CSNAMES = []
SCALE = 0.08838834764831845 * 1.4426950408889634
LOG2E = 1.4426950408889634


def f2u(x):
    return struct.unpack('<I', struct.pack('<f', x))[0]


def gen(cfg):
    a = Asm()
    DBG = cfg.get('dbg', 0)
    THR = cfg.get('thr', 16)
    nt = lambda k, d: ' nt' if cfg.get(k, d) else ''
    NT_CKV = nt('nt_ckv', 0)
    NT_WQ = nt('nt_wq', 0)
    NT_W1 = nt('nt_w1', 0)
    NT_V = nt('nt_v', 0)
    NT_S0 = nt('nt_s0', 0)
    NT_F = nt('nt_f', 0)

    def srd(base, ptr, nbytes):
        a(f'''
  s_mov_b32 s{base}, s{ptr}
  s_mov_b32 s{base+1}, s{ptr+1}
  s_mov_b32 s{base+2}, {nbytes}
  s_mov_b32 s{base+3}, 0x00020000''')

    def stamp(k):
        if not DBG:
            return
        a(f'''
  s_memrealtime s[98:99]
  s_waitcnt lgkmcnt(0)
  v_writelane_b32 v15, s98, {k}''')

    cst = {'n': 16}

    def cs(name):
        if not cfg.get('cyc', 0):
            return
        k = cst['n']
        cst['n'] += 1
        CSNAMES.append((k, name))
        a(f'''
  s_memtime s[98:99]
  s_waitcnt lgkmcnt(0)
  v_writelane_b32 v15, s98, {k}''')

    def tmo(lbl_retry):
        a(f'''
  s_sub_u32 s7, s7, 1
  s_cbranch_scc0 {lbl_retry}
  s_branch L_exit''')

    def sig(cnt, areg='v2'):
        a(f'''
  s_mov_b64 exec, 1
  ds_add_u32 {areg}, v3 offset:{L_CNT + cnt}
  s_mov_b64 exec, -1''')

    def wait(cnt, target, reads='', sleep=0, areg='v2'):
        l = a.label('wc')
        d = a.label('wcd')
        a(f'{l}:\n  ds_read_b32 v4, {areg} offset:{L_CNT + cnt}')
        if reads:
            a(reads)
        a(f'''
  s_waitcnt lgkmcnt(0)
  v_readfirstlane_b32 s68, v4
  s_cmp_ge_u32 s68, {target}
  s_cbranch_scc1 {d}''')
        if sleep:
            a(f'  s_sleep {sleep}')
        tmo(l)
        a(f'{d}:')

    def get_epoch():
        l = a.label('ge')
        d = a.label('ged')
        a(f'''
{l}:
  s_mov_b64 exec, 1
  buffer_load_dword v4, v2, s[56:59], 0 offen offset:128 sc1
  s_waitcnt vmcnt(0)
  v_readfirstlane_b32 s88, v4
  s_mov_b64 exec, -1
  s_cmp_lg_u32 s88, 0
  s_cbranch_scc1 {d}
  s_sleep 1''')
        tmo(l)
        a(f'{d}:\n  s_not_b32 s89, s88')

    def gpoll(loads, tagsrc='s[88:89]', init_masks=None):
        n = len(loads)
        for i in range(n):
            m = (init_masks or {}).get(i, None)
            if m is None:
                a(f'  s_mov_b64 s[{70+2*i}:{71+2*i}], -1')
            elif isinstance(m, str):
                a(f'  s_mov_b64 s[{70+2*i}:{71+2*i}], {m}')
            else:
                a(f'  s_mov_b32 s{70+2*i}, {m & 0xffffffff}\n  s_mov_b32 s{71+2*i}, {m >> 32}')
        l = a.label('gp')
        d = a.label('gpd')
        a(f'  s_mov_b32 s67, 0\n{l}:')
        for i, (txt, tr) in enumerate(loads):
            sk = a.label('gs')
            a(f'  s_mov_b64 exec, s[{70+2*i}:{71+2*i}]\n  s_cbranch_execz {sk}')
            a(txt)
            a(f'{sk}:')
        a('  s_waitcnt vmcnt(0)')
        for i, (txt, tr) in enumerate(loads):
            a(f'  s_mov_b64 exec, s[{70+2*i}:{71+2*i}]')
            a(f'  v_cmp_ne_u64_e64 s[{70+2*i}:{71+2*i}], {tagsrc}, v[{tr}:{tr+1}]')
        a('  s_mov_b64 exec, -1')
        a('  s_mov_b64 s[68:69], s[70:71]')
        for i in range(1, n):
            a(f'  s_or_b64 s[68:69], s[68:69], s[{70+2*i}:{71+2*i}]')
        a(f'''
  s_cmp_eq_u64 s[68:69], 0
  s_cbranch_scc1 {d}
  s_sub_u32 s7, s7, 1
  s_cbranch_scc1 L_exit
  s_bcnt1_i32_b64 s67, s[68:69]
  s_cmp_le_u32 s67, {THR}
  s_cbranch_scc1 {l}''')
        for i, (txt, tr) in enumerate(loads):
            nx = a.label('gn')
            sp = a.label('gsp')
            a(f'''
  s_cmp_eq_u64 s[{70+2*i}:{71+2*i}], 0
  s_cbranch_scc1 {nx}
  s_and_b64 s[68:69], s[{70+2*i}:{71+2*i}], s[96:97]
  s_cselect_b64 s[68:69], s[68:69], s[{70+2*i}:{71+2*i}]
  s_ff1_i32_b64 s68, s[68:69]
  s_lshl_b64 exec, 1, s68
{sp}:''')
            a(txt)
            a(f'''
  s_waitcnt vmcnt(0)
  v_cmp_eq_u64 vcc, {tagsrc}, v[{tr}:{tr+1}]
  s_cbranch_vccnz {l}
  s_sleep 1''')
            tmo(sp)
            a(f'{nx}:')
        a(f'{d}:')

    def xred(v, t, op, steps):
        for st in steps:
            if st[0] == 'r':
                a(f'  {op}_dpp v{v}, v{v}, v{v} row_ror:{st[1:]} row_mask:0xf bank_mask:0xf')
            else:
                a(f'''
  v_mov_b32 v{t}, v{v}
  v_permlane{st[1:]}_swap_b32 v{v}, v{t}
  {op} v{v}, v{v}, v{t}''')

    def xred2(v1_, v2_, t1, t2, op, steps):
        for st in steps:
            if st[0] == 'r':
                a(f'  {op}_dpp v{v1_}, v{v1_}, v{v1_} row_ror:{st[1:]} row_mask:0xf bank_mask:0xf')
                a(f'  {op}_dpp v{v2_}, v{v2_}, v{v2_} row_ror:{st[1:]} row_mask:0xf bank_mask:0xf')
            else:
                a(f'''
  v_mov_b32 v{t1}, v{v1_}
  v_mov_b32 v{t2}, v{v2_}
  v_permlane{st[1:]}_swap_b32 v{v1_}, v{t1}
  v_permlane{st[1:]}_swap_b32 v{v2_}, v{t2}
  {op} v{v1_}, v{v1_}, v{t1}
  {op} v{v2_}, v{v2_}, v{t2}''')

    def perm8(src, dst):
        for c2 in range(4):
            for q in range(4):
                lo = src + 8 * q + c2
                hi = src + 8 * q + 4 + c2
                a(f'  v_perm_b32 v{dst + 8*c2 + q}, v{hi}, v{lo}, s86')
                a(f'  v_perm_b32 v{dst + 8*c2 + 4 + q}, v{hi}, v{lo}, s87')

    def perm2(src, dst):
        for q in range(4):
            a(f'  v_perm_b32 v{dst + q}, v{src + 2*q + 1}, v{src + 2*q}, s86')
            a(f'  v_perm_b32 v{dst + 4 + q}, v{src + 2*q + 1}, v{src + 2*q}, s87')

    def perm4(src, dst):
        for c2 in range(2):
            for q in range(4):
                lo = src + 4 * q + c2
                hi = src + 4 * q + 2 + c2
                a(f'  v_perm_b32 v{dst + 8*c2 + q}, v{hi}, v{lo}, s86')
                a(f'  v_perm_b32 v{dst + 8*c2 + 4 + q}, v{hi}, v{lo}, s87')

    def mfma(d, A, B, first):
        c = '0' if first else f'v[{d}:{d+3}]'
        a(f'  v_mfma_f32_16x16x32_bf16 v[{d}:{d+3}], v[{A}:{A+3}], v[{B}:{B+3}], {c}')

    WQB = [64, 96, 128, 160]
    WQF = [192, 64, 96, 128]

    def gemv_issue(srdb, soff, stride, flags, rot, steps):
        for s in steps:
            a(f'''
  s_add_u32 s66, {rot}, {s}
  s_and_b32 s66, s66, 3
  s_mul_i32 s66, s66, {32*stride}
  s_add_u32 s66, s66, s{soff}''')
            for jj in range(8):
                a(f'  buffer_load_dwordx4 v[{WQB[s]+4*jj}:{WQB[s]+4*jj+3}], v9, s[{srdb}:{srdb+3}], s66 offen{flags}')
                if jj < 7:
                    a(f'  s_add_u32 s66, s66, {stride}')

    def gemv_prep(rowins, rowstride, rot, red=L_QRED):
        a(f'''
  {rowins}
  v_mul_u32_u24 v11, {rowstride}, v11
  v_lshl_add_u32 v11, v7, 4, v11
  s_lshl_b32 s64, s6, 8
  v_add_u32 v11, s64, v11''')
        for s in range(4):
            a(f'''
  s_add_u32 s66, {rot}, {s}
  s_and_b32 s66, s66, 3
  s_lshl_b32 s66, s66, 6
  v_add_u32 v{176+s}, s66, v11''')
        a(f'''
  v_lshlrev_b32 v180, 5, v6
  v_lshl_add_u32 v180, v7, 10, v180
  s_lshl_b32 s64, s6, 11
  s_add_u32 s64, s64, {red}
  v_add_u32 v180, s64, v180''')

    def gemv_reads(img):
        return '\n'.join(f'  ds_read_b128 v[{48+4*s}:{51+4*s}], v{176+s} offset:{img}' for s in range(4))

    def gemv_compute(cnt, red=L_QRED):
        for s in range(4):
            for i8 in range(8):
                mfma(16 + 4 * i8, 48 + 4 * s, WQF[s] + 4 * i8, s == 0)
        a('  s_mov_b32 exec_hi, 0')
        for i8 in range(8):
            a(f'  v_pk_add_f32 v[{16+4*i8}:{17+4*i8}], v[{16+4*i8}:{17+4*i8}], v[{18+4*i8}:{19+4*i8}]')
        for b in range(2):
            for h2 in range(4):
                o0 = (b * 512 + h2 * 8) // 4
                a(f'  ds_write2_b32 v180, v{16 + 8*h2 + b}, v{16 + 8*h2 + 4 + b} offset0:{o0} offset1:{o0+1}')
        a('  s_mov_b64 exec, -1')
        sig(cnt)
        wait(cnt, 4, '\n'.join(f'  ds_read_b128 v[{16+4*k}:{19+4*k}], v8 offset:{red + 1024*k}' for k in range(8)))
        for k in (0, 2, 4, 6):
            a(f'  v_pk_add_f32 v[{16+4*k}:{17+4*k}], v[{16+4*k}:{17+4*k}], v[{20+4*k}:{21+4*k}]')
            a(f'  v_pk_add_f32 v[{18+4*k}:{19+4*k}], v[{18+4*k}:{19+4*k}], v[{22+4*k}:{23+4*k}]')
        for k in (0, 4):
            a(f'  v_pk_add_f32 v[{16+4*k}:{17+4*k}], v[{16+4*k}:{17+4*k}], v[{24+4*k}:{25+4*k}]')
            a(f'  v_pk_add_f32 v[{18+4*k}:{19+4*k}], v[{18+4*k}:{19+4*k}], v[{26+4*k}:{27+4*k}]')
        a('''
  v_pk_add_f32 v[16:17], v[16:17], v[32:33]
  v_pk_add_f32 v[18:19], v[18:19], v[34:35]''')

    def silu4(src0):
        a(f'  s_mov_b32 s64, {f2u(-LOG2E)}')
        for k in range(4):
            a(f'  v_mul_f32 v{src0+4+k}, s64, v{src0+k}')
        for k in range(4):
            a(f'  v_exp_f32 v{src0+4+k}, v{src0+4+k}')
        for k in range(4):
            a(f'  v_add_f32 v{src0+4+k}, 1.0, v{src0+4+k}')
        for k in range(4):
            a(f'  v_rcp_f32 v{src0+4+k}, v{src0+4+k}')
        for k in range(4):
            a(f'  v_mul_f32 v{src0+k}, v{src0+k}, v{src0+4+k}')

    a(f'''
  s_cmp_ge_u32 s2, 256
  s_cbranch_scc1 L_exit
  s_load_dwordx16 s[16:31], s[0:1], 0
  s_load_dwordx8 s[32:39], s[0:1], 64
  s_load_dwordx4 s[40:43], s[0:1], 96
  s_load_dwordx2 s[44:45], s[0:1], 112
  s_memrealtime s[94:95]
  v_and_b32 v1, 63, v0
  v_lshrrev_b32 v4, 6, v0
  v_mov_b32 v2, 0
  v_mov_b32 v3, 1
  v_mov_b32 v15, 0
  v_readfirstlane_b32 s3, v4
  s_and_b32 s4, s2, 7
  s_lshr_b32 s5, s2, 3
  s_and_b32 s6, s3, 3
  s_mov_b32 s7, 3000000
  s_mov_b32 s86, 0x05040100
  s_mov_b32 s87, 0x07060302
  v_lshlrev_b32 v4, 2, v1
  ds_write_b32 v4, v2 offset:{L_CNT}
  v_and_b32 v6, 15, v1
  v_lshrrev_b32 v7, 4, v1
  v_lshlrev_b32 v8, 4, v1             ; lane*16
  v_and_b32 v10, 255, v0
  s_and_b32 s92, s5, 1
  s_lshr_b32 s91, s5, 1
  s_lshl_b32 s47, s91, 3
  s_add_u32 s47, s47, s4
  s_lshr_b32 s90, s91, 2
  s_and_b32 s46, s91, 3
  s_lshl_b32 s46, s46, 3
  s_add_u32 s46, s46, s4
  s_lshl_b32 s64, s91, 3
  s_and_b32 s64, s64, 63
  s_lshl_b64 s[96:97], -1, s64
  s_lshr_b32 s93, s3, 2
  s_xor_b32 s93, s93, 1               ; team: A=1, B=0
  s_waitcnt lgkmcnt(0)''')
    srd(8, 44, WS_BYTES)
    srd(56, 42, 256)
    stamp(0)
    a('''
  s_cmp_eq_u32 s92, 1
  s_cbranch_scc1 L_N
  s_cmp_ge_u32 s3, 4
  s_cbranch_scc1 L_FB''')

    srd(12, 20, 4 << 20)
    srd(48, 22, 4 << 20)
    a(f'''
  s_setprio 2
  v_lshlrev_b32 v9, 16, v7
  v_lshl_add_u32 v9, v6, 4, v9
  v_lshlrev_b32 v14, 13, v6
  v_lshl_add_u32 v14, v7, 4, v14
  s_lshl_b32 s64, s6, 20
  s_lshl_b32 s65, s46, 8
  s_add_u32 s64, s64, s65
  s_lshl_b32 s67, s4, 2
  v_mov_b32 v11, s67
  s_cmp_lg_u32 s6, 0
  s_cbranch_scc1 L_AF_w123
  s_or_b32 s67, s94, 1
  v_mov_b32 v12, s67
  s_cmp_ge_u32 s2, 8
  s_cbranch_scc1 L_AF_noep
  s_mov_b64 exec, 1
  buffer_store_dword v12, v11, s[56:59], 0 offen offset:128 sc1
  s_mov_b64 exec, -1
  s_barrier
  s_branch L_AF_gotep
L_AF_noep:
  s_barrier''')
    l = a.label('ep')
    a(f'''
{l}:
  buffer_load_dword v12, v11, s[56:59], 0 offen offset:128 sc1
  s_waitcnt vmcnt(0)
  v_cmp_eq_u32 vcc, 0, v12
  s_cbranch_vccz L_AF_gotep''')
    tmo(l)
    a(f'''
L_AF_gotep:
  ds_write_b32 v2, v12 offset:{L_EP}''')
    sig(C_EP)
    gemv_issue(12, 64, 8192, NT_WQ, 's90', [0])
    a('''
  s_branch L_AF_rest
L_AF_w123:
  s_barrier''')
    gemv_issue(12, 64, 8192, NT_WQ, 's90', [0])
    wait(C_EP, 1)
    a('L_AF_rest:')
    TH = cfg.get('wth', 1)
    gemv_issue(12, 64, 8192, NT_WQ, 's90', [1])
    if TH:
        a('  s_waitcnt vmcnt(8)')
    gemv_issue(12, 64, 8192, NT_WQ, 's90', [2])
    if TH:
        perm8(WQB[0], WQF[0])
        a('  s_waitcnt vmcnt(8)')
    gemv_issue(12, 64, 8192, NT_WQ, 's90', [3])
    if TH:
        perm8(WQB[1], WQF[1])
        a('  s_waitcnt vmcnt(8)')
    a('''
  s_lshl_b32 s64, s90, 7
  s_lshl_b32 s66, s6, 5
  s_add_u32 s64, s64, s66
  s_lshl_b32 s64, s64, 13
  s_add_u32 s64, s64, s65''')
    for ct in range(2):
        for s in range(4):
            r = 224 + 16 * ct + 4 * s
            a(f'  buffer_load_dwordx4 v[{r}:{r+3}], v14, s[48:51], s64 offen offset:{64*s}{NT_W1}')
        if ct == 0:
            a(f'  s_add_u32 s64, s64, {16*8192}')
    stamp(1)
    for s in range(2 if TH else 0, 4):
        a(f'  s_waitcnt vmcnt({(3-s)*8 + 8})')
        perm8(WQB[s], WQF[s])
    gemv_prep('v_and_b32 v11, 7, v6', 1040, 's90')
    a(f'''
  v_lshlrev_b32 v181, 3, v10
  v_and_b32 v182, 1, v6
  v_lshlrev_b32 v182, 8, v182
  v_lshl_add_u32 v182, v7, 4, v182
  s_lshl_b32 s64, s6, 9
  v_add_u32 v182, s64, v182
  v_and_b32 v5, 1, v6
  v_lshlrev_b32 v5, 16, v5
  v_bfe_u32 v14, v6, 1, 1
  v_lshl_add_u32 v5, v14, 6, v5
  v_lshl_add_u32 v5, v7, 4, v5
  v_cmp_ne_u32_e64 s[82:83], 0, v14
  s_lshl_b32 s63, s46, 11
  s_lshl_b32 s65, s90, 9
  s_add_u32 s63, s63, s65
  s_lshl_b32 s65, s6, 7
  s_add_u32 s63, s63, s65
  s_add_u32 s63, s63, {WS_QABS}''')
    stamp(2)
    wait(C_H, 1, sleep=1)
    wait(C_H, 4, gemv_reads(L_HIMG) + f'\n  ds_read_b32 v186, v2 offset:{L_EP + 4}')
    stamp(3)
    cs('A_h')
    gemv_compute(C_A2)
    cs('A_s1')
    a(f'''
  v_cvt_pk_bf16_f32 v16, v16, v17
  v_cvt_pk_bf16_f32 v17, v18, v19
  ds_write_b64 v181, v[16:17] offset:{L_QPRIV}''')
    for s in range(4):
        a(f'  ds_read_b128 v[{48+4*s}:{51+4*s}], v182 offset:{L_QPRIV + 64*s}')
    a('''
  v_not_b32 v187, v186
  v_readfirstlane_b32 s88, v186
  s_not_b32 s89, s88
  s_waitcnt vmcnt(0)''')
    for s in range(4):
        a(f'  s_waitcnt lgkmcnt({3-s})')
        mfma(16, 224 + 4 * s, 48 + 4 * s, s == 0)
        mfma(20, 240 + 4 * s, 48 + 4 * s, s == 0)
    a('''
  v_cvt_pk_bf16_f32 v184, v16, v17
  v_cvt_pk_bf16_f32 v185, v18, v19
  v_cvt_pk_bf16_f32 v28, v20, v21
  v_cvt_pk_bf16_f32 v29, v22, v23
  v_cndmask_b32 v184, v184, v28, s[82:83]
  v_cndmask_b32 v185, v185, v29, s[82:83]
  s_mov_b32 exec_lo, 0x000f000f
  s_mov_b32 exec_hi, 0x000f000f
  buffer_store_dwordx4 v[184:187], v5, s[8:11], s63 offen sc1
  s_mov_b64 exec, -1
  s_setprio 0''')
    sig(C_QK)
    cs('A_s2')
    stamp(4)
    for _ in range(cfg.get('vdelay', 0)):
        a('  s_sleep 8')
    a('  s_branch L_V')

    a('L_FB:')
    cst['n'] = 28
    srd(48, 38, 3 << 20)
    srd(52, 36, 2048)
    srd(60, 16, 2048)
    a(f'''
  s_setprio 3
  s_and_b32 s64, s91, 3
  s_lshl_b32 s95, s4, 2
  s_add_u32 s95, s95, s64             ; t
  s_lshl_b32 s64, s90, 2
  s_add_u32 s64, s64, s6
  s_lshl_b32 s64, s64, 5              ; k0
  v_lshrrev_b32 v11, 5, v1
  v_and_b32 v12, 31, v1
  v_lshlrev_b32 v13, 10, v11
  v_lshl_add_u32 v14, v12, 1, v13
  s_lshl_b32 s65, s64, 1
  buffer_load_ushort v16, v14, s[52:55], s65 offen
  v_mul_u32_u24 v9, {8*6144}, v7
  v_and_b32 v5, 7, v1
  v_lshl_add_u32 v9, v5, 2, v9
  v_and_b32 v5, 8, v1
  v_lshl_add_u32 v9, v5, 7, v9
  s_mul_i32 s64, s64, 6144
  s_lshl_b32 s65, s95, 5
  s_add_u32 s64, s64, s65
  v_lshl_add_u32 v14, v12, 5, v13
  buffer_load_dwordx4 v[20:23], v14, s[60:63], 0 offen
  buffer_load_dwordx4 v[24:27], v14, s[60:63], 0 offen offset:16
  v_lshl_add_u32 v14, v6, 1, v13
  buffer_load_ushort v28, v14, s[60:63], s65 offen''')
    for jj in range(8):
        a(f'  buffer_load_dword v{64+jj}, v9, s[48:51], s64 offen{NT_S0}')
        if jj < 7:
            a('  s_add_u32 s64, s64, 6144')
    a(f'''
  s_barrier
  s_waitcnt vmcnt(11)
  v_lshlrev_b32 v16, 16, v16
  v_mul_f32 v17, {f2u(-LOG2E)}, v16
  v_exp_f32 v17, v17
  v_add_f32 v17, 1.0, v17
  v_rcp_f32 v17, v17
  v_mul_f32 v16, v16, v17
  v_cvt_pk_bf16_f32 v16, v16, v16
  v_lshlrev_b32 v5, 1, v10
  ds_write_b16 v5, v16 offset:{L_SCP}
  v_and_b32 v5, 1, v6
  v_lshlrev_b32 v5, 6, v5
  v_lshl_add_u32 v5, v7, 4, v5
  s_lshl_b32 s64, s6, 7
  v_add_u32 v5, s64, v5
  ds_read_b128 v[96:99], v5 offset:{L_SCP}
  s_cmp_lg_u32 s6, 0
  s_cbranch_scc1 L_B_noln
  s_waitcnt vmcnt(8)
  v_mov_b32 v56, 0
  v_mov_b32 v57, 0
  v_mov_b32 v59, 0x3f803f80''')
    for k in range(8):
        a(f'  v_dot2c_f32_bf16 v56, v{20+k}, v59')
        a(f'  v_dot2c_f32_bf16 v57, v{20+k}, v{20+k}')
    a('  s_nop 2')
    xred2(56, 57, 60, 61, 'v_add_f32', ['r1', 'r2', 'r4', 'r8', 'p16'])
    a(f'''
  v_mul_f32 v56, {f2u(1.0/512)}, v56
  v_mov_b32 v60, {f2u(1e-5)}
  v_fmac_f32 v60, {f2u(1.0/512)}, v57
  v_fma_f32 v60, -v56, v56, v60
  v_max_f32 v60, {f2u(1e-5)}, v60
  v_rsq_f32 v57, v60
  v_lshlrev_b32 v28, 16, v28
  v_sub_f32 v28, v28, v56
  v_mul_f32 v28, v28, v57
L_B_noln:
  v_and_b32 v14, 1, v1
  v_lshlrev_b32 v14, 7, v14
  v_bfe_u32 v13, v1, 1, 4
  v_lshl_add_u32 v14, v13, 3, v14
  v_lshl_add_u32 v14, v11, 2, v14
  v_xor_b32 v13, 64, v14
  s_cmp_eq_u32 s90, 0
  s_cselect_b32 s65, 1.0, 0
  v_lshlrev_b32 v60, 6, v11
  v_lshl_add_u32 v60, v6, 2, v60
  s_lshl_b32 s63, s90, 5
  s_add_u32 s63, s63, s95
  s_lshl_b32 s63, s63, 7
  s_lshl_b32 s64, s6, 8
  v_lshl_add_u32 v5, v6, 3, s64
  s_waitcnt vmcnt(0)''')
    perm2(64, 72)
    a('  s_waitcnt lgkmcnt(0)')
    mfma(48, 96, 72, True)
    mfma(52, 96, 76, True)
    a(f'''
  s_mov_b64 exec, 0xffff
  ds_write_b64 v5, v[48:49] offset:{L_S0RED}
  ds_write_b64 v5, v[52:53] offset:{L_S0RED + 128}
  s_mov_b64 exec, -1''')
    sig(C_S0)
    a('''
  s_cmp_lg_u32 s6, 0
  s_cbranch_scc1 L_B_s0done''')
    wait(C_EP, 1, f'  ds_read_b32 v58, v2 offset:{L_EP}')
    rd = []
    for uu in range(4):
        rd.append(f'  ds_read_b32 v{32+uu}, v14 offset:{L_S0RED + 256*uu}\n  ds_read_b32 v{36+uu}, v13 offset:{L_S0RED + 256*uu}')
    wait(C_S0, 4, '\n'.join(rd))
    a(f'''
  v_add_f32 v32, v32, v33
  v_add_f32 v34, v34, v35
  v_add_f32 v36, v36, v37
  v_add_f32 v38, v38, v39
  v_add_f32 v32, v32, v34
  v_add_f32 v36, v36, v38
  v_add_f32 v36, s65, v36
  v_fmac_f32 v32, v28, v36
  v_mov_b32_dpp v33, v32 quad_perm:[1,1,3,3] row_mask:0xf bank_mask:0xf
  v_cvt_pk_bf16_f32 v56, v32, v33
  v_mov_b32_dpp v57, v56 quad_perm:[2,2,2,2] row_mask:0xf bank_mask:0xf
  v_not_b32 v59, v58
  s_mov_b32 exec_lo, 0x00001111
  s_mov_b32 exec_hi, 0x00001111
  buffer_store_dwordx4 v[56:59], v60, s[8:11], s63 offen sc1
  s_mov_b64 exec, -1
L_B_s0done:''')
    stamp(1)
    a(f'''
  v_lshlrev_b32 v13, 4, v10
  v_lshrrev_b32 v11, 5, v10
  v_lshlrev_b32 v11, 2, v11
  v_bfe_u32 v12, v10, 2, 1
  v_mul_u32_u24 v12, 1040, v12
  v_lshrrev_b32 v14, 3, v10
  v_lshl_add_u32 v12, v14, 5, v12
  v_and_b32 v14, 3, v10
  v_lshl_add_u32 v12, v14, 3, v12''')
    l = a.label('ep')
    d = a.label('epd')
    a(f'''
{l}:
  buffer_load_dword v36, v11, s[56:59], 0 offen offset:128 sc1
  buffer_load_dword v38, v2, s[56:59], 0 offen offset:128 sc1
  s_waitcnt vmcnt(0)
  v_cmp_eq_u32 vcc, 0, v36
  v_cmp_eq_u32_e64 s[66:67], 0, v38
  s_or_b64 vcc, vcc, s[66:67]
  s_cbranch_vccz {d}
  s_sleep 1''')
    tmo(l)
    a(f'''
{d}:
  v_not_b32 v37, v36
  v_readfirstlane_b32 s88, v38
  s_not_b32 s89, s88
  ds_write_b32 v2, v38 offset:{L_EP + 4}''')
    gpoll([(f'  s_movk_i32 s66, {4096*i}\n  buffer_load_dwordx4 v[{16+4*i}:{19+4*i}], v13, s[8:11], s66 offen sc1', 18 + 4 * i) for i in range(4)],
          tagsrc='v[36:37]')
    for i in range(4):
        a(f'  ds_write_b64 v12, v[{16+4*i}:{17+4*i}] offset:{L_HIMG + 2080*i}')
    sig(C_H)
    a('  s_setprio 0')
    stamp(3)
    wait(C_QK, 4, sleep=2)
    a(f'''
  v_mul_u32_u24 v9, {8*6144}, v7
  v_lshl_add_u32 v9, v6, 3, v9
  s_lshl_b32 s64, s90, 2
  s_add_u32 s64, s64, s6
  s_mul_i32 s64, s64, {32*6144}
  s_lshl_b32 s65, s95, 7
  s_add_u32 s64, s64, s65
  s_add_u32 s64, s64, 2048''')
    for jj in range(8):
        a(f'  buffer_load_dwordx2 v[{64+2*jj}:{65+2*jj}], v9, s[48:51], s64 offen')
        if jj < 7:
            a('  s_add_u32 s64, s64, 6144')
    a(f'''
  s_lshl_b32 s64, s6, 9
  v_lshl_add_u32 v5, v6, 4, s64
  v_add_u32 v5, {L_MIMG}, v5
  v_lshlrev_b32 v11, 13, v7
  v_lshl_add_u32 v11, v6, 4, v11
  s_lshl_b32 s63, s90, 14
  s_lshl_b32 s64, s95, 8
  s_add_u32 s63, s63, s64
  s_add_u32 s63, s63, {WS_MOD}
  v_mov_b32 v46, s88
  v_mov_b32 v47, s89
  s_waitcnt vmcnt(0)''')
    perm4(64, 80)
    for i4 in range(4):
        mfma(16 + 4 * i4, 96, 80 + 4 * i4, True)
    a('  s_mov_b64 exec, 0xffff')
    for b in range(2):
        a(f'  ds_write2_b32 v5, v{16+b}, v{20+b} offset0:{64*b} offset1:{64*b+1}')
        a(f'  ds_write2_b32 v5, v{24+b}, v{28+b} offset0:{64*b+2} offset1:{64*b+3}')
    a('  s_mov_b64 exec, -1')
    sig(C_SC)
    a('''
  s_cmp_lg_u32 s6, 0
  s_cbranch_scc1 L_FB_wait''')
    wait(C_SC, 4, '\n'.join(f'  ds_read_b128 v[{16+4*k}:{19+4*k}], v8 offset:{L_MIMG + 512*k}' for k in range(4)))
    a('''
  v_pk_add_f32 v[16:17], v[16:17], v[20:21]
  v_pk_add_f32 v[18:19], v[18:19], v[22:23]
  v_pk_add_f32 v[24:25], v[24:25], v[28:29]
  v_pk_add_f32 v[26:27], v[26:27], v[30:31]
  v_pk_add_f32 v[16:17], v[16:17], v[24:25]
  v_pk_add_f32 v[18:19], v[18:19], v[26:27]
  v_cvt_pk_bf16_f32 v44, v16, v17
  v_cvt_pk_bf16_f32 v45, v18, v19
  s_mov_b32 exec_hi, 0
  buffer_store_dwordx4 v[44:47], v11, s[8:11], s63 offen sc1
  s_mov_b64 exec, -1''')
    a('L_FB_wait:')
    for _ in range(cfg.get('vdelay', 0)):
        a('  s_sleep 8')

    a('L_V:')
    cst['n'] = 44
    srd(12, 26, 4 << 20)
    srd(48, 24, 4 << 20)
    WOB = [64, 80, 96, 112]
    WOF = [128, 64, 80, 96]
    a(f'''
  v_lshlrev_b32 v9, 18, v7
  v_lshl_add_u32 v9, v6, 4, v9
  s_lshl_b32 s64, s90, 7
  s_lshl_b32 s65, s6, 2
  s_add_u32 s64, s64, s65
  s_lshl_b32 s64, s64, 13
  s_lshl_b32 s65, s46, 8
  s_add_u32 s64, s64, s65''')
    for jj in range(8):
        ro = 16 * (jj >> 2) + (jj & 3)
        a(f'  s_add_u32 s65, s64, {ro*8192}')
        a(f'  buffer_load_dwordx4 v[{144+4*jj}:{147+4*jj}], v9, s[48:51], s65 offen{NT_V}')
    a(f'''
  v_lshlrev_b32 v9, 13, v7
  v_lshl_add_u32 v9, v6, 3, v9
  s_lshl_b32 s64, s46, 17
  s_lshl_b32 s65, s3, 7
  s_add_u32 s64, s64, s65''')
    for s in range(4):
        a(f'''
  s_add_u32 s66, s90, {s}
  s_and_b32 s66, s66, 3
  s_lshl_b32 s66, s66, 15
  s_add_u32 s66, s66, s64''')
        for jj in range(8):
            a(f'  buffer_load_dwordx2 v[{WOB[s]+2*jj}:{WOB[s]+2*jj+1}], v9, s[12:15], s66 offen offset:{(jj&3)*1024}{NT_V}')
            if jj == 3:
                a('  s_add_u32 s66, s66, 4096')
    a('  s_waitcnt vmcnt(32)')
    perm8(144, 176)
    for s in range(4):
        a(f'  s_waitcnt vmcnt({(3-s)*8})')
        perm4(WOB[s], WOF[s])
    a('L_V_done:')
    stamp(5)
    a(f'''
  s_mul_i32 s54, s93, {TS}
  s_add_u32 s54, s54, {L_TB}
  s_lshl_b32 s64, s93, 4
  v_mov_b32 v239, s64
  v_lshrrev_b32 v11, 2, v6
  v_lshl_add_u32 v11, v7, 3, v11
  v_and_b32 v13, 3, v6
  v_mul_u32_u24 v160, 288, v11
  v_lshl_add_u32 v160, v13, 3, v160
  s_mul_i32 s65, s6, 72
  s_add_u32 s65, s65, s54
  v_add_u32 v160, s65, v160
  v_mul_u32_u24 v161, 288, v1
  v_add_u32 v161, s54, v161
  s_lshl_b32 s65, s6, 8
  s_add_u32 s65, s65, s54
  v_lshl_add_u32 v162, v1, 1, s65
  v_and_b32 v163, 1, v6
  v_lshlrev_b32 v163, 7, v163
  v_lshl_add_u32 v163, v7, 4, v163
  v_add_u32 v163, s65, v163
  s_lshl_b32 s65, s6, 6
  s_add_u32 s65, s65, s54
  v_lshl_add_u32 v164, v6, 1, s65
  v_lshl_add_u32 v165, v7, 4, s65
  s_lshl_b32 s65, s93, 2
  s_add_u32 s65, s65, s6
  s_mul_i32 s65, s65, 272
  v_lshl_add_u32 v166, v6, 4, s65
  v_and_b32 v11, 7, v6
  v_mul_u32_u24 v11, 272, v11
  v_lshl_add_u32 v11, v7, 4, v11''')
    for s in range(4):
        a(f'''
  s_add_u32 s66, s90, {s}
  s_and_b32 s66, s66, 3
  s_lshl_b32 s66, s66, 6
  v_add_u32 v{168+s}, s66, v11''')
    a(f'''
  v_lshrrev_b32 v11, 2, v10
  v_and_b32 v12, 3, v10
  v_mul_u32_u24 v172, 384, v11
  v_lshl_add_u32 v172, v12, 4, v172
  v_mul_u32_u24 v173, 72, v10
  v_add_u32 v173, s54, v173
  s_lshl_b32 s64, s46, 1
  s_add_u32 s64, s64, s93
  s_lshl_b32 s64, s64, 2
  s_add_u32 s64, s64, s90
  s_mul_i32 s53, s64, 24576
  s_add_u32 s53, s53, {WS_P3}
  s_lshl_b32 s52, s46, 2
  s_add_u32 s52, s52, s90
  s_lshl_b32 s52, s52, 11
  s_lshl_b32 s64, s3, 8
  s_add_u32 s52, s52, s64
  s_add_u32 s52, s52, {WS_R1}
  v_lshlrev_b32 v174, 18, v7
  v_lshl_add_u32 v174, v6, 4, v174    ; R1 voff: g'*262144 + n*16
  v_mov_b32 v234, s88
  v_mov_b32 v235, s89
  v_lshlrev_b32 v13, 4, v10''')
    a('''
  v_mov_b32 v248, 0
  s_cmp_lt_u32 s91, 14
  s_cbranch_scc1 L_prep_done''')
    a('L_prep_rs:')
    srd(48, 16, 2048)
    a(f'''
  s_lshl_b32 s63, s4, 1
  s_add_u32 s63, s63, s91
  s_sub_u32 s63, s63, 14              ; lc
  v_and_b32 v18, 31, v1
  s_lshl_b32 s64, s63, 5
  v_add_u32 v18, s64, v18             ; col
  v_lshlrev_b32 v248, 1, v18
  v_lshrrev_b32 v20, 2, v18
  v_lshlrev_b32 v20, 4, v20
  s_lshl_b32 s64, s93, 13
  s_add_u32 s64, s64, {WS_MOD}
  s_add_u32 s65, s64, {384*16}
  s_lshl_b32 s62, s93, 10
  s_cmp_lg_u32 s6, 0
  s_cbranch_scc1 L_prep_done
  buffer_load_ushort v250, v248, s[48:51], s62 offen''')
    gpoll([(f'  s_add_u32 s66, s{64+w}, {16384*k}\n  buffer_load_dwordx4 v[{24+16*w+4*k}:{27+16*w+4*k}], v20, s[8:11], s66 offen sc1', 26 + 16 * w + 4 * k)
           for w in range(2) for k in range(4)])
    a('''
  v_and_b32 v17, 3, v1
  v_cmp_gt_u32 vcc, 2, v17
  v_and_b32 v22, 1, v17
  v_lshlrev_b32 v22, 4, v22
  v_mov_b32 v251, 0
  v_mov_b32 v252, 0''')
    for w in range(2):
        for k in range(4):
            r = 24 + 16 * w + 4 * k
            a(f'''
  v_cndmask_b32 v{r}, v{r+1}, v{r}, vcc
  v_lshrrev_b32 v{r}, v22, v{r}
  v_lshlrev_b32 v{r}, 16, v{r}
  v_add_f32 v{251+w}, v{251+w}, v{r}''')
    a('''
  v_lshlrev_b32 v250, 16, v250
L_prep_done:''')
    stamp(6)
    l0 = a.label('sp')
    l1 = a.label('gp')
    d1 = a.label('gpd')
    a(f'''
  s_mov_b32 s67, 0
{l1}:''')
    for k in range(6):
        a(f'  buffer_load_dwordx4 v[{16+4*k}:{19+4*k}], v172, s[8:11], s53 offen offset:{64*k} sc1')
    a(f'''
  s_waitcnt vmcnt(0)
  v_bitop3_b32 v40, v16, v17, v18 bitop3:0x96
  v_bitop3_b32 v41, v20, v21, v22 bitop3:0x96
  v_bitop3_b32 v42, v24, v25, v26 bitop3:0x96
  v_bitop3_b32 v43, v28, v29, v30 bitop3:0x96
  v_bitop3_b32 v44, v32, v33, v34 bitop3:0x96
  v_bitop3_b32 v45, v36, v37, v38 bitop3:0x96
  v_bitop3_b32 v40, v40, v41, v42 bitop3:0x96
  v_bitop3_b32 v43, v43, v44, v45 bitop3:0x96
  v_xor_b32 v40, v40, v43
  v_xor_b32 v41, v19, v23
  v_xor_b32 v42, v27, v31
  v_xor_b32 v43, v35, v39
  v_xor_b32 v44, v19, v27
  v_xor_b32 v45, v35, v40
  v_or3_b32 v41, v41, v42, v43
  v_xor_b32 v42, v19, v35
  v_or3_b32 v41, v41, v44, v45
  v_xor_b32 v43, s88, v19
  v_or3_b32 v41, v41, v42, v43
  v_cmp_ne_u32 vcc, 0, v41
  s_and_b64 exec, exec, vcc
  s_cbranch_execz {d1}
  s_sub_u32 s7, s7, 1
  s_cbranch_scc1 L_exit
  s_bcnt1_i32_b64 s67, exec
  s_cmp_le_u32 s67, {THR}
  s_cbranch_scc1 {l1}
  s_mov_b64 s[70:71], exec
  s_and_b64 s[68:69], s[70:71], s[96:97]
  s_cselect_b64 s[68:69], s[68:69], s[70:71]
  s_ff1_i32_b64 s68, s[68:69]
  s_lshl_b64 exec, 1, s68
{l0}:
  buffer_load_dwordx4 v[36:39], v172, s[8:11], s53 offen offset:320 sc1
  s_waitcnt vmcnt(0)
  v_cmp_eq_u32 vcc, s88, v39
  s_mov_b64 s[68:69], exec
  s_mov_b64 exec, s[70:71]
  s_cbranch_vccnz {l1}
  s_mov_b64 exec, s[68:69]
  s_sleep 1''')
    tmo(l0)
    a(f'''
{d1}:
  s_mov_b64 exec, -1''')
    stamp(7)
    cs('C_p3')
    for k in range(6):
        a(f'  ds_write2_b32 v173, v{16+4*k}, v{17+4*k} offset0:{3*k} offset1:{3*k+1}')
        if k < 5:
            a(f'  ds_write_b32 v173, v{18+4*k} offset:{12*k+8}')
    sig(C_G3, 'v239')
    rd = ['  ds_read_b32 v40, v161 offset:64']
    for ks in range(2):
        for nt_ in range(2):
            r = 16 + 8 * ks + 4 * nt_
            off = ks * 32 * 288 + 32 * nt_
            rd.append(f'  ds_read_b64_tr_b16 v[{r}:{r+1}], v160 offset:{off}')
            rd.append(f'  ds_read_b64_tr_b16 v[{r+2}:{r+3}], v160 offset:{off + 4*288}')
    wait(C_G3, 4, '\n'.join(rd), areg='v239')
    cs('C_g3')
    a('  v_mov_b32 v41, v40')
    xred(41, 42, 'v_max_f32', ['r1', 'r2', 'r4', 'r8', 'p16', 'p32'])
    a(f'''
  v_sub_f32 v40, v40, v41
  v_exp_f32 v40, v40
  v_cvt_pk_bf16_f32 v42, v40, v40
  v_mov_b32 v41, v40
  v_lshlrev_b32 v43, 16, v42
  v_sub_f32 v43, v40, v43
  v_cvt_pk_bf16_f32 v43, v43, v43
  ds_write_b16 v162, v42 offset:{L_WPRIV}
  ds_write_b16 v162, v43 offset:{L_WPRIV + 128}
  ds_read_b128 v[44:47], v163 offset:{L_WPRIV}
  ds_read_b128 v[48:51], v163 offset:{L_WPRIV + 64}''')
    xred(41, 42, 'v_add_f32', ['r1', 'r2', 'r4', 'r8', 'p16', 'p32'])
    a('  v_rcp_f32 v41, v41\n  s_waitcnt lgkmcnt(0)')
    for ks in range(2):
        for nt_ in range(2):
            mfma(32 + 4 * nt_, 44 + 4 * ks, 16 + 8 * ks + 4 * nt_, ks == 0)
    a(f'''
  v_add_f32 v32, v32, v33
  v_add_f32 v36, v36, v37
  v_mul_f32 v32, v32, v41
  v_mul_f32 v36, v36, v41
  v_cvt_pk_bf16_f32 v32, v32, v36
  s_mov_b64 exec, 0xffff
  ds_write_b16 v164, v32 offset:{L_CPRIV}
  ds_write_b16_d16_hi v164, v32 offset:{L_CPRIV + 32}
  s_mov_b64 exec, -1
  ds_read_b128 v[60:63], v165 offset:{L_CPRIV}
  s_waitcnt lgkmcnt(0)''')
    cs('C_comb')
    for i8 in range(8):
        mfma(16 + 4 * i8, 60, 176 + 4 * i8, True)
    a(f'''
  v_cvt_pk_bf16_f32 v60, v16, v20
  v_cvt_pk_bf16_f32 v61, v24, v28
  v_cvt_pk_bf16_f32 v62, v32, v36
  v_cvt_pk_bf16_f32 v63, v40, v44
  s_mov_b64 exec, 0xffff
  ds_write_b128 v166, v[60:63] offset:{L_PCTX}
  s_mov_b64 exec, -1''')
    sig(C_C1)
    wait(C_C1, 8, '\n'.join(f'  ds_read_b128 v[{32+4*s}:{35+4*s}], v{168+s} offset:{L_PCTX}' for s in range(4)))
    cs('C_st1')
    for s in range(4):
        for i4 in range(4):
            mfma(16 + 4 * i4, 32 + 4 * s, WOF[s] + 4 * i4, s == 0)
    a('  s_mov_b32 exec_hi, 0')
    for i4 in range(4):
        r = 16 + 4 * i4
        a(f'  v_pk_add_f32 v[{r}:{r+1}], v[{r}:{r+1}], v[{r+2}:{r+3}]\n  v_add_f32 v{r}, v{r}, v{r+1}')
    a('''
  v_cvt_pk_bf16_f32 v232, v16, v20
  v_cvt_pk_bf16_f32 v233, v24, v28
  buffer_store_dwordx4 v[232:235], v174, s[8:11], s52 offen sc1
  s_mov_b64 exec, -1''')
    cs('C_st2')
    stamp(8)
    a('''
  s_cmp_lt_u32 s91, 14
  s_cbranch_scc1 L_done''')
    a('L_RS:')
    srd(12, 40, 2048)
    a(f'''
  v_lshrrev_b32 v11, 3, v1
  v_and_b32 v16, 7, v1
  v_lshlrev_b32 v16, 4, v16
  v_lshl_add_u32 v9, v11, 12, v16     ; R2 voff
  v_lshl_add_u32 v11, v11, 11, v16    ; R1 voff
  s_lshl_b32 s64, s6, 7
  s_add_u32 s64, s64, s54
  v_lshlrev_b32 v12, 5, v6
  v_lshl_add_u32 v12, v7, 4, v12
  v_add_u32 v12, s64, v12
  v_bfe_u32 v16, v1, 2, 3
  v_and_b32 v17, 3, v1
  v_lshlrev_b32 v14, 5, v17
  v_lshl_add_u32 v14, v16, 2, v14
  v_add_u32 v14, s54, v14
  v_lshlrev_b32 v5, 3, v1
  s_lshl_b32 s61, s93, 18
  s_lshl_b32 s66, s6, 16
  s_add_u32 s61, s61, s66
  s_lshl_b32 s66, s63, 7
  s_add_u32 s61, s61, s66
  s_add_u32 s61, s61, {WS_R1}
  s_lshl_b32 s95, s93, 12
  s_lshl_b32 s66, s63, 8
  s_add_u32 s95, s95, s66
  s_add_u32 s95, s95, {WS_AG}
  v_mov_b32 v16, 0x3f80
  v_mov_b32 v19, 0x3f800000
  v_mov_b32 v58, 0
  v_mov_b32 v59, 0''')
    for q in range(2):
        a(f'''
  v_cmp_eq_u32 vcc, {2*q}, v6
  v_cndmask_b32 v{56+q}, 0, v16, vcc
  v_cmp_eq_u32 vcc, {2*q+1}, v6
  v_cndmask_b32 v{56+q}, v{56+q}, v19, vcc''')

    def rs_sum(cnt, xoff):
        for i in range(4):
            a(f'  v_mov_b32 v{18+4*i}, 0\n  v_mov_b32 v{19+4*i}, 0')
        for i in range(4):
            mfma(32, 16 + 4 * i, 56, i == 0)
        for r in range(4):
            a(f'  v_mov_b32 v{36+r}, v{32+r}')
        for r in range(4):
            a(f'  v_permlane32_swap_b32 v{32+r}, v{36+r}')
        a(f'''
  v_pk_add_f32 v[32:33], v[32:33], v[36:37]
  v_pk_add_f32 v[34:35], v[34:35], v[38:39]
  s_mov_b64 exec, 0x000f000f
  ds_write_b128 v12, v[32:35] offset:{L_RSX + xoff}
  s_mov_b64 exec, -1''')
        sig(cnt, 'v239')

    gpoll([(f'  s_add_u32 s66, s61, {16384*i}\n  buffer_load_dwordx4 v[{16+4*i}:{19+4*i}], v11, s[8:11], s66 offen sc1', 18 + 4 * i) for i in range(4)])
    stamp(11)
    rs_sum(C_RS1, 0)
    a('''
  s_cmp_lg_u32 s6, 0
  s_cbranch_scc1 L_rs2''')
    wait(C_RS1, 4, '\n'.join(f'  ds_read_b32 v{16+k}, v14 offset:{L_RSX + 128*k}' for k in range(4)), areg='v239')
    a('''
  v_add_f32 v16, v16, v17
  v_add_f32 v18, v18, v19
  v_add_f32 v16, v16, v18
  v_fma_f32 v232, v251, v16, v250
  v_mov_b32_dpp v233, v232 quad_perm:[1,1,3,3] row_mask:0xf bank_mask:0xf
  s_mov_b64 exec, 0x55555555
  buffer_store_dwordx4 v[232:235], v5, s[8:11], s95 offen sc1
  s_mov_b64 exec, -1''')
    stamp(12)
    a(f'''
L_rs2:
  s_lshl_b32 s61, s93, 11
  s_lshl_b32 s64, s6, 17
  s_add_u32 s61, s61, s64
  s_lshl_b32 s64, s63, 7
  s_add_u32 s61, s61, s64
  s_add_u32 s61, s61, {WS_R2}
  s_cmp_eq_u32 s6, 3
  s_cselect_b64 s[94:95], 0, -1
  v_mov_b32 v24, 0
  v_mov_b32 v25, 0
  v_mov_b32 v28, 0
  v_mov_b32 v29, 0''')
    gpoll([(f'  s_add_u32 s66, s61, {32768*i}\n  buffer_load_dwordx4 v[{16+4*i}:{19+4*i}], v9, s[8:11], s66 offen sc1', 18 + 4 * i) for i in range(4)],
          init_masks={2: 's[94:95]', 3: 's[94:95]'})
    stamp(13)
    rs_sum(C_RS2, 512)
    a('''
  s_cmp_lg_u32 s6, 0
  s_cbranch_scc1 L_done''')
    wait(C_RS2, 4, '\n'.join(f'  ds_read_b32 v{16+k}, v14 offset:{L_RSX + 512 + 128*k}' for k in range(4)), areg='v239')
    a('''
  v_add_f32 v16, v16, v17
  v_add_f32 v18, v18, v19
  v_add_f32 v16, v16, v18
  v_fma_f32 v16, v252, v16, v232
  v_cvt_pk_bf16_f32 v16, v16, v16
  s_mov_b32 exec_hi, 0
  buffer_store_short v16, v248, s[12:15], s62 offen
  s_mov_b64 exec, -1
  s_branch L_done''')

    a('L_N:')
    srd(12, 18, 16 << 20)
    a('  s_barrier')
    if cfg.get('pf', 1):
        srd(48, 20, 4 << 20)
        srd(52, 22, 4 << 20)
        a(f'''
  v_lshlrev_b32 v9, 13, v7
  v_lshl_add_u32 v9, v6, 4, v9
  s_lshl_b32 s64, s90, 3
  s_add_u32 s64, s64, s3
  s_lshl_b32 s64, s64, 17             ; (128q + 16w)*8192
  s_lshl_b32 s65, s46, 8
  s_add_u32 s64, s64, s65''')
        for k in range(4):
            a(f'  buffer_load_dwordx4 v[{64+8*k}:{67+8*k}], v9, s[48:51], s64 offen')
            a(f'  buffer_load_dwordx4 v[{68+8*k}:{71+8*k}], v9, s[52:55], s64 offen')
            a(f'  s_add_u32 s64, s64, {4*8192}')
    a(f'''
  s_lshl_b32 s64, s47, 17
  s_lshl_b32 s65, s3, 14
  s_add_u32 s64, s64, s65
  s_mul_i32 s65, s3, {16*ROWS}
  s_add_u32 m0, s65, {L_CKV}''')
    for _ in range(cfg.get('ndelay', 0)):
        a('  s_sleep 8')
    for r in range(16):
        a(f'  buffer_load_dwordx4 v8, s[12:15], s64 offen{NT_CKV} lds')
        if r < 15:
            a(f'  s_addk_i32 m0, {ROWS}\n  s_add_u32 s64, s64, 1024')
    a(f'''
  v_lshlrev_b32 v13, 4, v0
  v_and_b32 v14, 127, v0
  v_lshrrev_b32 v5, 1, v14
  v_lshlrev_b32 v5, 8, v5
  v_and_b32 v14, 1, v14
  v_lshl_add_u32 v5, v14, 3, v5
  v_lshrrev_b32 v14, 7, v0
  v_lshl_add_u32 v5, v14, 4, v5
  s_lshr_b32 s64, s47, 6
  s_lshl_b32 s64, s64, 16
  s_add_u32 s62, s64, {WS_QABS}
  v_lshlrev_b32 v14, 4, v6
  s_mul_i32 s95, s4, 14
  s_add_u32 s95, s95, s91             ; fs
  s_waitcnt vmcnt(0)''')
    sig(C_KV)
    stamp(2)

    def qgather(buf):
        get_epoch()
        gpoll([(f'  s_add_u32 s66, s62, {8192*i}\n  buffer_load_dwordx4 v[{buf+4*i}:{buf+3+4*i}], v13, s[8:11], s66 offen sc1', buf + 2 + 4 * i) for i in range(8)])
        wait(C_PVF, 8)
        for i in range(8):
            a(f'  ds_write_b64 v5, v[{buf+4*i}:{buf+1+4*i}] offset:{(L_QIMG, L_QIMG1)[i >> 2] + 64*(i & 3)}')
        sig(C_Q)

    a('''
  s_cmp_ge_u32 s3, 4
  s_cbranch_scc1 L_NB''')
    cst['n'] = 20
    a(f'''
  v_lshrrev_b32 v11, 2, v6
  v_lshl_add_u32 v11, v7, 2, v11
  v_mul_u32_u24 v11, {ROWS}, v11
  v_and_b32 v12, 3, v6
  v_lshl_add_u32 v11, v12, 3, v11
  s_lshl_b32 s65, s6, 8
  s_add_u32 s65, s65, {L_CKV}
  v_add_u32 v11, s65, v11
  v_add_u32 v12, {64*ROWS}, v11
  v_mul_u32_u24 v9, 1552, v6
  v_lshl_add_u32 v9, v7, 4, v9
  s_mul_i32 s64, s6, 384
  s_add_u32 s64, s64, {L_OUT}
  v_add_u32 v9, s64, v9''')
    wait(C_KV, 8)
    PVF = {}
    for ku in range(4):
        for t8 in range(8):
            r = 64 + 32 * ku + 4 * t8
            PVF[(t8, ku)] = r
            base = 'v11' if ku < 2 else 'v12'
            off = (ku & 1) * 32 * ROWS + 32 * t8
            a(f'  ds_read_b64_tr_b16 v[{r}:{r+1}], {base} offset:{off}')
            a(f'  ds_read_b64_tr_b16 v[{r+2}:{r+3}], {base} offset:{off + 16*ROWS}')
    sig(C_PVF)
    stamp(3)
    qgather(192)
    G = 40
    for i in range(6):
        a(f'  v_mov_b32 v{G+4*i+3}, s88')
    stamp(4)
    cs('A_q')

    def p_reads(hg):
        return ('\n'.join(f'  ds_read_b128 v[{16+4*ku}:{19+4*ku}], v8 offset:{L_PIMG + 4096*hg + 1024*ku}' for ku in range(4)) +
                f'\n  ds_read_b128 v[32:35], v14 offset:{L_SSUM + 256*hg}\n  ds_read_b128 v[36:39], v14 offset:{L_SMAX + 256*hg}')

    def stats(rinv, lse):
        return [
            '  v_add_f32 v32, v32, v33', '  v_add_f32 v34, v34, v35', '  v_add_f32 v32, v32, v34',
            f'  v_rcp_f32 v{rinv}, v32', '  v_log_f32 v34, v32', '  v_max3_f32 v36, v36, v37, v38', '  v_max_f32 v36, v36, v39',
            f'  v_mov_b32 v35, {f2u(SCALE)}', f'  v_fma_f32 v{lse}, v36, v35, v34']

    def epi(acc, rinv, lse, hg):
        out = []
        out.append(f'  v_mov_b32 v{G+21}, v{lse}')
        out.append(f'  v_xor_b32 v{G+22}, s88, v{lse}')
        for grp in range(3):
            k0, k1 = (0, 12) if grp == 0 else ((12, 24) if grp == 1 else (24, 32))
            for k in range(k0, k1, 2):
                out.append(f'  v_pk_mul_f32 v[{acc+k}:{acc+k+1}], v[{acc+k}:{acc+k+1}], v[{rinv}:{rinv+1}] op_sel_hi:[1,0]')
            regs = []
            for dd in range(k0 // 2, k1 // 2):
                dst = G + 4 * (dd // 3) + dd % 3
                regs.append(dst)
                out.append(f'  v_cvt_pk_bf16_f32 v{dst}, v{acc+2*dd}, v{acc+1+2*dd}')
            for j in range(0, len(regs), 2):
                out.append(f'  v_bitop3_b32 v{G+22}, v{G+22}, v{regs[j]}, v{regs[j+1]} bitop3:0x96')
            for i in (2 * grp, 2 * grp + 1):
                out.append(f'  ds_write_b128 v9, v[{G+4*i}:{G+3+4*i}] offset:{OUTS*hg + 64*i}')
        return out

    wait(C_M0, 4, sleep=1)
    wait(C_P0, 4, p_reads(0))
    cs('A_p0')
    st = stats(12, 13)
    for ku in range(4):
        for t8 in range(8):
            mfma(192 + 4 * t8, PVF[(t8, ku)], 16 + 4 * ku, ku == 0)
            if st and ku == 1:
                a(st.pop(0))
    for x_ in st:
        a(x_)
    for x_ in epi(192, 12, 13, 0):
        a(x_)
    sig(C_O0)
    cs('A_pv0')
    wait(C_P1, 4, p_reads(1))
    cs('A_p1')
    st = stats(12, 13)
    for ku in range(4):
        for t8 in range(3):
            mfma(224 + 4 * t8, PVF[(t8, ku)], 16 + 4 * ku, ku == 0)
            if st:
                a(st.pop(0))
    e = epi(224, 12, 13, 1)
    n0 = 2 + 6 + 6 + 3 + 2
    f0, f1, f2 = e[:n0], e[n0:n0 + 17], e[n0 + 17:]
    for ku in range(4):
        for t8 in range(3, 6):
            mfma(224 + 4 * t8, PVF[(t8, ku)], 16 + 4 * ku, ku == 0)
            if ku >= 1:
                for _ in range(2):
                    if f0:
                        a(f0.pop(0))
    for x_ in f0:
        a(x_)
    for ku in range(4):
        for t8 in range(6, 8):
            mfma(224 + 4 * t8, PVF[(t8, ku)], 16 + 4 * ku, ku == 0)
            if ku >= 1:
                for _ in range(3):
                    if f1:
                        a(f1.pop(0))
    for x_ in f1 + f2:
        a(x_)
    sig(C_O1)
    cs('A_pv1')
    stamp(7)
    a('''
  s_cmp_ge_u32 s91, 14
  s_cbranch_scc1 L_done''')
    srd(48, 30, 512 * 3584)
    srd(52, 32, 512 * 3584)
    srd(60, 34, 1792 * 1024)
    GUB = [208, 216, 224, 232]
    GUF = [240, 208, 216, 224]
    wait(C_ST, 4, sleep=1)
    for _ in range(cfg.get('fdelay', 0)):
        a('  s_sleep 8')
    a(f'''
  v_mul_u32_u24 v9, {8*3584}, v7
  v_and_b32 v11, 7, v1
  v_lshl_add_u32 v9, v11, 2, v9
  s_mul_i32 s65, s6, {128*3584}
  s_lshl_b32 s64, s95, 5
  s_add_u32 s65, s65, s64''')
    for mat in range(2):
        m = 0x00ff00ff if mat == 0 else 0xff00ff00
        a(f'  s_mov_b32 exec_lo, {m}\n  s_mov_b32 exec_hi, {m}\n  s_mov_b32 s64, s65')
        for s in range(4):
            for jj in range(8):
                a(f'  buffer_load_dword v{GUB[s]+jj}, v9, s[{48 if mat == 0 else 52}:{51 if mat == 0 else 55}], s64 offen{NT_F}')
                a('  s_add_u32 s64, s64, %d' % (3584 if jj < 7 else 3584 * 25))
    a(f'''
  s_mov_b64 exec, -1
  v_and_b32 v11, 1, v7
  v_lshlrev_b32 v11, 13, v11
  v_lshl_add_u32 v11, v6, 3, v11
  s_lshl_b32 s64, s95, 14
  s_lshl_b32 s65, s6, 8
  s_add_u32 s64, s64, s65''')
    for jj in range(8):
        for blk in range(2):
            a(f'  buffer_load_dwordx2 v[{144+16*blk+2*jj}:{145+16*blk+2*jj}], v11, s[60:63], s64 offen offset:{(jj&3)*1024 + 128*blk}{NT_W1}')
        if jj == 3:
            a('  s_add_u32 s64, s64, 4096')
    a('  s_waitcnt vmcnt(16)')
    for s in range(4):
        perm2(GUB[s], GUF[s])
    a('  s_waitcnt vmcnt(0)')
    perm4(144, 112)
    perm4(160, 144)
    stamp(8)
    a(f'''
  v_and_b32 v11, 3, v6
  v_mul_u32_u24 v11, 1040, v11
  v_lshl_add_u32 v11, v7, 4, v11
  s_lshl_b32 s64, s6, 8
  v_add_u32 v11, s64, v11
  s_lshl_b32 s64, s6, 9
  v_lshl_add_u32 v12, v6, 4, s64
  v_and_b32 v13, 1, v1
  v_lshlrev_b32 v13, 8, v13
  v_bfe_u32 v14, v1, 1, 3
  v_lshl_add_u32 v13, v14, 4, v13
  v_lshrrev_b32 v14, 5, v1
  v_lshl_add_u32 v13, v14, 7, v13
  v_bfe_u32 v14, v1, 4, 1
  v_lshl_add_u32 v13, v14, 2, v13
  v_lshlrev_b32 v56, 3, v14
  s_lshl_b32 s64, s6, 7
  v_lshlrev_b32 v57, 6, v14
  v_lshl_add_u32 v57, v6, 1, v57
  v_add_u32 v57, s64, v57
  v_and_b32 v58, 1, v6
  v_lshlrev_b32 v58, 6, v58
  v_lshl_add_u32 v58, v7, 4, v58
  v_add_u32 v58, s64, v58
  s_lshl_b32 s63, s95, 12
  s_lshl_b32 s64, s6, 9
  s_add_u32 s63, s63, s64
  s_add_u32 s63, s63, {WS_R2}''')
    for i in range(4):
        a(f'  v_mov_b32 v{64+4*i+2}, s88\n  v_mov_b32 v{64+4*i+3}, s89')
    for ps in range(2):
        rd = '\n'.join(f'  ds_read_b128 v[{16+4*s}:{19+4*s}], v11 offset:{(L_YIMG1, L_YIMG2)[ps] + 64*s}' for s in range(4))
        if ps == 0:
            wait(C_Y1, 4, sleep=2)
            wait(C_Y1, 4, rd)
        else:
            wait(C_Y2, 1, sleep=1)
            wait(C_Y2, 4, rd)
            stamp(9)
            cs('A_y2')
        for s in range(4):
            mfma(32, 16 + 4 * s, GUF[s], s == 0)
            mfma(36, 16 + 4 * s, GUF[s] + 4, s == 0)
        a(f'''
  s_mov_b64 exec, 0xffff
  ds_write_b128 v12, v[32:35] offset:{L_FRED + ps*2048}
  ds_write_b128 v12, v[36:39] offset:{L_FRED + ps*2048 + 256}
  s_mov_b64 exec, -1''')
        sig(C_F1 if ps == 0 else C_F2)
        rd = []
        for uu in range(4):
            o = L_FRED + ps * 2048 + uu * 512
            rd.append(f'  ds_read_b32 v{16+2*uu}, v13 offset:{o}\n  ds_read_b32 v{17+2*uu}, v13 offset:{o+8}')
        if ps == 1:
            for uu in range(4):
                rd.append(f'  ds_read_b64 v[{24+2*uu}:{25+2*uu}], v56 offset:{L_YST + 16*uu}')
        wait(C_F1 if ps == 0 else C_F2, 4 if ps == 0 else 8, '\n'.join(rd))
        if ps == 1:
            cs('A_gu')
        a('''
  v_pk_add_f32 v[16:17], v[16:17], v[18:19]
  v_pk_add_f32 v[20:21], v[20:21], v[22:23]''')
        if ps == 0:
            a('  v_pk_add_f32 v[60:61], v[16:17], v[20:21]')
    a(f'''
  v_pk_add_f32 v[16:17], v[16:17], v[20:21]
  v_pk_add_f32 v[24:25], v[24:25], v[26:27]
  v_pk_add_f32 v[28:29], v[28:29], v[30:31]
  v_pk_add_f32 v[24:25], v[24:25], v[28:29]
  v_add_f32 v16, v16, v17
  v_mul_f32 v24, {f2u(1.0/512)}, v24
  v_mov_b32 v26, {f2u(1e-5)}
  v_fmac_f32 v26, {f2u(1.0/512)}, v25
  v_fma_f32 v26, -v24, v24, v26
  v_max_f32 v26, {f2u(1e-5)}, v26
  v_rsq_f32 v26, v26
  v_fma_f32 v16, -v24, v60, v16
  v_fma_f32 v16, v16, v26, v61
  v_mov_b32 v17, v16
  v_permlane32_swap_b32 v16, v17
  v_mul_f32 v18, v16, v16
  v_mov_b32 v19, {f2u(-2*0.7978845608028654*LOG2E)}
  v_fmac_f32 v19, {f2u(-2*0.7978845608028654*0.044715*LOG2E)}, v18
  v_mul_f32 v19, v19, v16
  v_exp_f32 v19, v19
  v_add_f32 v19, 1.0, v19
  v_rcp_f32 v19, v19
  v_mul_f32 v16, v16, v17
  v_mul_f32 v16, v16, v19
  v_cvt_pk_bf16_f32 v17, v16, v16
  v_lshlrev_b32 v18, 16, v17
  v_sub_f32 v18, v16, v18
  v_cvt_pk_bf16_f32 v18, v18, v18
  ds_write_b16 v57, v17 offset:{L_HHP}
  ds_write_b16 v57, v18 offset:{L_HHP + 32}
  ds_read_b128 v[16:19], v58 offset:{L_HHP}
  s_waitcnt lgkmcnt(0)''')
    DNF = [112, 144]
    for blk in range(2):
        for i4 in range(4):
            mfma(24 + 16 * blk + 4 * i4, 16, DNF[blk] + 4 * i4, True)
    a('  s_mov_b64 exec, 0xffff')
    for blk in range(2):
        for b in range(2):
            g = 64 + 4 * (2 * blk + b)
            r = 24 + 16 * blk + b
            a(f'''
  v_cvt_pk_bf16_f32 v{g}, v{r}, v{r+4}
  v_cvt_pk_bf16_f32 v{g+1}, v{r+8}, v{r+12}
  buffer_store_dwordx4 v[{g}:{g+3}], v8, s[8:11], s63 offen offset:{2048*b + 256*blk} sc1''')
    a('  s_mov_b64 exec, -1')
    cs('A_dn')
    stamp(10)
    a('  s_branch L_done')

    a('L_NB:')
    cst['n'] = 36
    a(f'''
  v_mul_u32_u24 v9, {ROWS}, v6
  v_lshl_add_u32 v9, v7, 4, v9
  s_mul_i32 s65, s6, {32*ROWS}
  s_add_u32 s65, s65, {L_CKV}
  v_add_u32 v9, s65, v9
  s_lshl_b32 s64, s6, 2
  v_add_u32 v59, s64, v14
  s_lshl_b32 s64, s6, 10
  v_add_u32 v60, s64, v8
  s_mov_b32 s60, {f2u(SCALE)}
  s_lshr_b32 s64, s47, 6
  s_mul_i32 s63, s64, {4*24576}
  s_and_b32 s64, s47, 63
  s_mul_i32 s64, s64, 384
  s_add_u32 s63, s63, s64
  s_add_u32 s63, s63, {WS_P3}
  s_add_u32 s61, s63, {128*24576}
  s_movk_i32 s64, 683
  s_movk_i32 s65, 2731''')
    assert all((i * 683) >> 16 == i // 96 for i in range(1536)) and all((i * 2731) >> 16 == i // 24 for i in range(96))
    for k in range(6):
        a(f'''
  v_add_u32 v16, {256*k}, v10
  v_mul_u32_u24 v17, s64, v16
  v_lshrrev_b32 v17, 16, v17          ; head
  v_mul_u32_u24 v18, 96, v17
  v_sub_u32 v18, v16, v18             ; rem
  v_mul_u32_u24 v{32+k}, 1552, v17
  v_lshl_add_u32 v{32+k}, v18, 4, v{32+k}
  v_add_u32 v{32+k}, {L_OUT}, v{32+k}
  v_mul_u32_u24 v19, s65, v18
  v_lshrrev_b32 v19, 16, v19          ; cq
  v_lshl_add_u32 v17, v17, 3, v19
  v_mul_u32_u24 v{40+k}, 24576, v17
  v_mul_u32_u24 v19, 24, v19
  v_sub_u32 v18, v18, v19
  v_lshl_add_u32 v{40+k}, v18, 4, v{40+k}''')
    wait(C_KV, 8)
    for kt in range(2):
        for s in range(16):
            r = 64 + 64 * kt + 4 * s
            a(f'  ds_read_b128 v[{r}:{r+3}], v9 offset:{kt*16*ROWS + 64*s}')
    sig(C_PVF)
    stamp(3)
    qgather(192)
    stamp(4)
    cs('B_q')
    a('  s_setprio 2')
    wait(C_Q, 8)
    cs('B_barq')
    for s in range(16):
        a(f'  ds_read_b128 v[{192+4*s}:{195+4*s}], v8 offset:{L_QIMG + 1024*s}')

    def maxpart(acc, hg):
        a(f'''
  v_max3_f32 v56, v{acc}, v{acc+1}, v{acc+2}
  v_max3_f32 v56, v56, v{acc+3}, v{acc+4}
  v_max3_f32 v56, v56, v{acc+5}, v{acc+6}
  v_max_f32 v56, v56, v{acc+7}''')
        xred(56, 57, 'v_max_f32', ['p16', 'p32'])
        a(f'  ds_write_b32 v59, v56 offset:{L_SMAX + 256*hg}')

    def sm_list(acc, hg):
        o = ['  v_max3_f32 v56, v48, v49, v50', '  v_max_f32 v56, v56, v51', '  v_mul_f32 v56, s60, v56']
        o += [f'  v_fma_f32 v{acc+k}, v{acc+k}, s60, -v56' for k in range(8)]
        o += [f'  v_exp_f32 v{acc+k}, v{acc+k}' for k in range(8)]
        o += [f'  v_cvt_pk_bf16_f32 v{52+k}, v{acc+2*k}, v{acc+1+2*k}' for k in range(4)]
        o += [f'  ds_write_b128 v60, v[52:55] offset:{L_PIMG + 4096*hg}']
        o += [f'  v_add_f32 v57, v{acc}, v{acc+1}', f'  v_add_f32 v61, v{acc+2}, v{acc+3}', f'  v_add_f32 v62, v{acc+4}, v{acc+5}',
              f'  v_add_f32 v63, v{acc+6}, v{acc+7}', '  v_add_f32 v57, v57, v61', '  v_add_f32 v62, v62, v63', '  v_add_f32 v57, v57, v62']
        for st in ('16', '32'):
            o += ['  v_mov_b32 v61, v57', f'  v_permlane{st}_swap_b32 v57, v61', '  v_add_f32 v57, v57, v61']
        o += [f'  ds_write_b32 v59, v57 offset:{L_SSUM + 256*hg}']
        return o

    for s in range(16):
        a('  s_waitcnt lgkmcnt(15)')
        for kt in range(2):
            mfma(16 + 4 * kt, 64 + 64 * kt + 4 * s, 192 + 4 * s, s == 0)
        a(f'  ds_read_b128 v[{192+4*s}:{195+4*s}], v8 offset:{L_QIMG1 + 1024*s}')
    fill = sm_list(16, 0)
    for s in range(16):
        if s < 3:
            a(f'  s_waitcnt lgkmcnt({15 - s})')
        if s == 3:
            a('  s_waitcnt lgkmcnt(0)')
            maxpart(16, 0)
            sig(C_M0)
        if s == 8:
            wait(C_M0, 4, f'  ds_read_b128 v[48:51], v14 offset:{L_SMAX}')
        for kt in range(2):
            mfma(24 + 4 * kt, 64 + 64 * kt + 4 * s, 192 + 4 * s, s == 0)
            if s >= 8:
                for _ in range(2):
                    if fill:
                        a(fill.pop(0))
    for x_ in fill:
        a(x_)
    sig(C_P0)
    cs('B_qk')
    maxpart(24, 1)
    sig(C_M1)
    wait(C_M1, 4, f'  ds_read_b128 v[48:51], v14 offset:{L_SMAX + 256}')
    for x_ in sm_list(24, 1):
        a(x_)
    sig(C_P1)
    cs('B_sm1')
    stamp(5)
    for hg in range(2):
        wait((C_O0, C_O1)[hg], 1, sleep=1)
        wait((C_O0, C_O1)[hg], 4, '\n'.join(f'  ds_read_b128 v[{64+24*hg+4*k}:{67+24*hg+4*k}], v{32+k} offset:{OUTS*hg}' for k in range(6)))
        for k in range(6):
            a(f'  buffer_store_dwordx4 v[{64+24*hg+4*k}:{67+24*hg+4*k}], v{40+k}, s[8:11], {("s63", "s61")[hg]} offen sc1')
        cs(f'B_o{hg}')
    sig(C_ST)
    a('  s_setprio 0')
    stamp(6)
    a('''
  s_cmp_ge_u32 s91, 14
  s_cbranch_scc1 L_done
  v_lshlrev_b32 v13, 4, v10''')
    a(f'''
  v_lshrrev_b32 v17, 1, v10
  v_lshlrev_b32 v17, 4, v17
  v_lshlrev_b32 v248, 2, v10''')
    a('''
  v_and_b32 v18, 1, v10
  v_cmp_ne_u32_e64 s[94:95], 0, v18''')
    for which, base in (('cb', 256), ('sb', 128)):
        gpoll([(f'  s_mov_b32 s66, {WS_MOD + 16384*k + (b*512 + base)*16}\n  buffer_load_dwordx4 v[{64+16*b+4*k}:{67+16*b+4*k}], v17, s[8:11], s66 offen sc1', 66 + 16 * b + 4 * k)
               for b in range(2) for k in range(4)])
        for b in range(2):
            lo, hi = 24 + 2 * b, 25 + 2 * b
            init = '1.0' if which == 'cb' else '0'
            a(f'  v_mov_b32 v{lo}, {init}\n  v_mov_b32 v{hi}, {init}')
            for k in range(4):
                r = 64 + 16 * b + 4 * k
                a(f'''
  v_cndmask_b32 v{r}, v{r}, v{r+1}, s[94:95]
  v_lshlrev_b32 v{r+1}, 16, v{r}
  v_and_b32 v{r}, 0xffff0000, v{r}
  v_add_f32 v{lo}, v{lo}, v{r+1}
  v_add_f32 v{hi}, v{hi}, v{r}''')
            a(f'  v_cvt_pk_bf16_f32 v{28+b}, v{lo}, v{hi}')
            if which == 'cb':
                a(f'  v_lshlrev_b32 v{249+2*b}, 16, v{28+b}\n  v_and_b32 v{250+2*b}, 0xffff0000, v{28+b}')
            a(f'  ds_write_b32 v248, v{28+b} offset:{L_YIMG1 + 1040*b + (0 if which == "cb" else 2080)}')
    sig(C_Y1)
    a('''
  s_lshl_b32 s64, s6, 4
  v_mov_b32 v14, s64''')
    gpoll([(f'  s_mov_b32 s66, {WS_AG}\n  buffer_load_dwordx4 v[16:19], v13, s[8:11], s66 offen sc1', 18),
           (f'  s_mov_b32 s66, {WS_AG + 4096}\n  buffer_load_dwordx4 v[20:23], v13, s[8:11], s66 offen sc1', 22)])
    stamp(9)
    a(f'''
  v_mul_f32 v24, v16, v249
  v_mul_f32 v25, v17, v250
  v_mul_f32 v26, v20, v251
  v_mul_f32 v27, v21, v252
  v_cvt_pk_bf16_f32 v28, v24, v25
  v_cvt_pk_bf16_f32 v29, v26, v27
  ds_write_b32 v248, v28 offset:{L_YIMG2}
  ds_write_b32 v248, v29 offset:{L_YIMG2 + 1040}
  v_lshlrev_b32 v30, 16, v28
  v_and_b32 v31, 0xffff0000, v28
  v_lshlrev_b32 v32, 16, v29
  v_and_b32 v33, 0xffff0000, v29
  v_sub_f32 v24, v24, v30
  v_sub_f32 v25, v25, v31
  v_sub_f32 v26, v26, v32
  v_sub_f32 v27, v27, v33
  v_cvt_pk_bf16_f32 v28, v24, v25
  v_cvt_pk_bf16_f32 v29, v26, v27
  ds_write_b32 v248, v28 offset:{L_YIMG2 + 2080}
  ds_write_b32 v248, v29 offset:{L_YIMG2 + 3120}''')
    sig(C_Y2)
    a('''
  v_add_f32 v24, v16, v17
  v_mul_f32 v25, v16, v16
  v_fmac_f32 v25, v17, v17
  v_add_f32 v26, v20, v21
  v_mul_f32 v27, v20, v20
  v_fmac_f32 v27, v21, v21''')
    for st in ['r1', 'r2', 'r4', 'r8']:
        for v in range(24, 28):
            xred(v, 28, 'v_add_f32', [st])
    for st in ['p16', 'p32']:
        xred2(24, 25, 28, 29, 'v_add_f32', [st])
        xred2(26, 27, 30, 31, 'v_add_f32', [st])
    a(f'''
  s_mov_b64 exec, 1
  ds_write_b128 v14, v[24:27] offset:{L_YST}
  s_mov_b64 exec, -1''')
    sig(C_F2)
    a('  s_branch L_done')
    a('L_done:')
    if DBG:
        stamp(15)
        a(f'''
  s_lshl_b32 s64, s2, 3
  s_add_u32 s64, s64, s3
  s_lshl_b32 s64, s64, 8
  s_add_u32 s64, s64, {WS_DBG}
  v_lshlrev_b32 v4, 2, v1
  buffer_store_dword v15, v4, s[8:11], s64 offen''')
    a('''
L_exit:
  s_endpgm''')

    body = a.finish()
    hdr = open('adaLN_cond__compressed_kv_cla__glu_gated_geglu__decode.s.ref').read().split('\n')
    comments = [l for l in hdr if l.startswith(';') and '@launch' not in l and 'Override' not in l and 'grid=ceil' not in l]
    out = '\n'.join(comments) + f'''
; @launch grid=(256,1,1) block=(512,1,1) lds={LDS_BYTES}
.amdgcn_target "amdgcn-amd-amdhsa--gfx950"
.text
.globl {NAME}
.p2align 8
.type {NAME},@function
{NAME}:
{body}.section .rodata,"a"
.p2align 6
.amdhsa_kernel {NAME}
  .amdhsa_next_free_vgpr 256
  .amdhsa_next_free_sgpr 100
  .amdhsa_accum_offset 256
  .amdhsa_group_segment_fixed_size 0
  .amdhsa_kernarg_size 120
  .amdhsa_user_sgpr_count 2
  .amdhsa_user_sgpr_kernarg_segment_ptr 1
  .amdhsa_system_sgpr_workgroup_id_x 1
.end_amdhsa_kernel
'''
    return out


if __name__ == '__main__':
    cfg = {}
    outp = sys.argv[1]
    for kv in sys.argv[2:]:
        k, v = kv.split('=')
        cfg[k] = int(v)
    open(outp, 'w').write(gen(cfg))
    import json
    json.dump(CSNAMES, open(outp + '.names', 'w'))
```
